```python
import torch

def _softmax(x, axis=-1):
    return torch.softmax(x, dim=axis)
def _gelu(x):
    return torch.nn.functional.gelu(x, approximate="tanh")
def _silu(x):
    return torch.nn.functional.silu(x)
def _sigmoid(x):
    return torch.sigmoid(x)
def _layernorm(x, axis=-1, eps=1e-5):
    m = x.mean(dim=axis, keepdim=True)
    v = x.var(dim=axis, keepdim=True, unbiased=False)
    return (x - m) / torch.sqrt(v + eps)
def _scatter_add(tgt, idx, src, axis=0):
    return tgt.clone().index_add_(axis, idx, src)
def _segment_sum(src, seg, n):
    out = torch.zeros((n,) + src.shape[1:], dtype=src.dtype)
    return out.index_add_(0, seg, src)
def _pad(x, pw):
    flat = tuple(v for pair in reversed(pw) for v in pair)
    return torch.nn.functional.pad(x, flat)

kernel_name = 'sequential_preLN__mha_block_cached__geglu_ffn__decode'

def setup_inputs():

    _w = (lambda a: (lambda t: t.to(torch.bfloat16) if t.is_floating_point() else t)(torch.as_tensor(a)))
    def _A_setup():
        B, Sq, D = 1, 1, 512
        H, Sk, Dh = 32, 16384, 128
        return {
            "x": _w((lambda *s: torch.randn(*s, dtype=torch.bfloat16) * 0.05)(B, Sq, D)),
            "k_cache": _w((lambda *s: torch.randn(*s, dtype=torch.bfloat16) * 3.2)(B, H, Sk, Dh)),
            "v_cache": _w((lambda *s: torch.randn(*s, dtype=torch.bfloat16) * 0.4)(B, H, Sk, Dh)),
            "wq": _w((lambda *s: torch.randn(*s, dtype=torch.bfloat16) * 3.2)(D, H * Dh) * (D ** -0.5)),
            "wo": _w((lambda *s: torch.randn(*s, dtype=torch.bfloat16) * 0.4)(H * Dh, D) * ((H * Dh) ** -0.5)),
        }
    _A_in = _A_setup()

    def _B_setup():
        B, S, D, F = 1, 1, 512, 1792
        return {
            "x": _w((lambda *s: torch.randn(*s, dtype=torch.bfloat16) * 0.05)(B, S, D)),
            "w_gate": _w((lambda *s: torch.randn(*s, dtype=torch.bfloat16) * 0.05)(D, F)),
            "w_up": _w((lambda *s: torch.randn(*s, dtype=torch.bfloat16) * 0.05)(D, F)),
            "w_down": _w((lambda *s: torch.randn(*s, dtype=torch.bfloat16) * 0.05)(F, D)),
        }
    _B_in = _B_setup()

    return {
        "A_x": _A_in["x"],
        "A_k_cache": _A_in["k_cache"],
        "A_v_cache": _A_in["v_cache"],
        "A_wq": _A_in["wq"],
        "A_wo": _A_in["wo"],
        "B_x": _B_in["x"],
        "B_w_gate": _B_in["w_gate"],
        "B_w_up": _B_in["w_up"],
        "B_w_down": _B_in["w_down"],
    }

def reference(A_x, A_k_cache, A_v_cache, A_wq, A_wo, B_x, B_w_gate, B_w_up, B_w_down):
    def _A_ref(x, k_cache, v_cache, wq, wo):
        B, Sq, D = x.shape
        H, Dh = 32, 128
        q = (lambda x, *d: x.permute(*d))((x @ wq).reshape(B, Sq, H, Dh), 0, 2, 1, 3)
        scores = torch.einsum("bhqd,bhkd->bhqk", q, k_cache) * (Dh ** -0.5)
        p = _softmax(scores, axis=-1)
        o = torch.einsum("bhqk,bhkd->bhqd", p, v_cache)
        return (lambda x, *d: x.permute(*d))(o, 0, 2, 1, 3).reshape(B, Sq, H * Dh) @ wo

    def _B_ref(x, w_gate, w_up, w_down):
        return (_gelu(x @ w_gate) * (x @ w_up)) @ w_down

    x = A_x
    h = x + _A_ref(_layernorm(x, axis=-1), A_k_cache, A_v_cache, A_wq, A_wo)
    h2 = h + _B_ref(_layernorm(h, axis=-1), B_w_gate, B_w_up, B_w_down)
    return h2
```

```python
import re

TRANS = ("v_exp_f32", "v_log_f32", "v_rcp_f32", "v_rsq_f32", "v_sqrt_f32", "v_sin_f32", "v_cos_f32")


def regs_of(tok):
    tok = tok.strip()
    neg = tok.startswith("-")
    if neg:
        tok = tok[1:]
    if tok.startswith("abs(") and tok.endswith(")"):
        tok = tok[4:-1]
    if tok.startswith("|") and tok.endswith("|"):
        tok = tok[1:-1]
    m = re.fullmatch(r"([vs])(\d+)", tok)
    if m:
        return [(m.group(1), int(m.group(2)))]
    m = re.fullmatch(r"([vs])\[(\d+):(\d+)\]", tok)
    if m:
        return [(m.group(1), i) for i in range(int(m.group(2)), int(m.group(3)) + 1)]
    if tok == "vcc":
        return [("s", 106), ("s", 107)]
    if tok == "vcc_lo":
        return [("s", 106)]
    if tok == "exec":
        return [("s", 126), ("s", 127)]
    return []


class Emitter:
    def __init__(self):
        self.lines = []
        self.pos = 0
        self.vw = {}
        self.sw = {}
        self.stores = []
        self.auto = True

    def raw(self, text):
        self.lines.append(text)

    def comment(self, text):
        self.lines.append("    ; " + text)

    def label(self, name):
        self.lines.append(name + ":")
        self._nop(5)

    def _nop(self, n):
        while n > 0:
            k = min(n, 16)
            self.lines.append("    s_nop %d" % (k - 1))
            self.pos += k
            n -= k

    def __call__(self, text):
        for ln in text.strip().split("\n"):
            ln = ln.strip()
            if not ln:
                continue
            if ln.startswith(";"):
                self.lines.append("    " + ln)
                continue
            self.ins(ln)

    def ins(self, ln):
        code = ln.split(";")[0].strip()
        parts = code.split(None, 1)
        op = parts[0]
        rest = parts[1] if len(parts) > 1 else ""
        toks = [t.strip() for t in re.split(r",(?![^\[]*\])", rest)] if rest else []
        mods = ""
        if toks:
            lt = toks[-1].split(None, 1)
            if len(lt) > 1:
                toks[-1] = lt[0]
                mods = lt[1]
        base = op
        for suf in ("_dpp", "_e32", "_e64"):
            if base.endswith(suf):
                base = base[: -len(suf)]
        is_dpp = op.endswith("_dpp") or "row_" in mods or "quad_perm" in mods
        need = 0

        def req(prod_pos, n):
            nonlocal need
            need = max(need, prod_pos + 1 + n)

        reads, writes = [], []
        if op.startswith("v_"):
            dst = toks[0]
            srcs = toks[1:]
            if base in ("v_cmp",):
                pass
            if base.startswith("v_cmp"):
                writes = regs_of(dst)
                for s in srcs:
                    reads += regs_of(s)
            elif base in ("v_permlane32_swap_b32", "v_permlane16_swap_b32"):
                writes = regs_of(toks[0]) + regs_of(toks[1])
                reads = list(writes)
            elif base in ("v_readfirstlane_b32", "v_readlane_b32"):
                writes = regs_of(dst)
                reads = regs_of(srcs[0])
                if len(srcs) > 1:
                    reads += regs_of(srcs[1])
            else:
                writes = regs_of(dst)
                for s in srcs:
                    reads += regs_of(s)
                if base in ("v_fmac_f32", "v_dot2c_f32_bf16", "v_dot2c_f32_f16"):
                    reads += regs_of(dst)
                if "_co_" in base:
                    writes += regs_of(toks[1])
                    reads = []
                    for s in toks[2:]:
                        reads += regs_of(s)
            is_trans = base in TRANS
            is_dl = base.startswith("v_dot")
            for r in reads:
                if r[0] == "v" and r in self.vw:
                    p, kind, pop = self.vw[r]
                    if kind == "trans" and not is_trans:
                        req(p, 1)
                    if kind == "dl":
                        if pop == base and r in regs_of(dst) and base.startswith("v_dot2c") and \
                           r not in sum([regs_of(s) for s in srcs], []):
                            pass
                        else:
                            req(p, 3)
                if r[0] == "s" and r in self.sw and r[1] < 128:
                    if base in ("v_readlane_b32", "v_writelane_b32") and r in (regs_of(srcs[1]) if len(srcs) > 1 else []):
                        req(self.sw[r], 4)
                    else:
                        req(self.sw[r], 2)
            for r in writes:
                if r[0] == "v" and r in self.vw:
                    p, kind, pop = self.vw[r]
                    if kind == "dl" and pop != base:
                        req(p, 3)
            if is_dpp:
                for r in regs_of(srcs[0]):
                    if r in self.vw:
                        req(self.vw[r][0], 2)
            if base.startswith("v_permlane"):
                for r in reads:
                    if r in self.vw:
                        req(self.vw[r][0], 2)
            if base in ("v_readfirstlane_b32", "v_readlane_b32"):
                for r in regs_of(srcs[0]):
                    if r in self.vw:
                        req(self.vw[r][0], 1)
            for r in writes:
                if r[0] == "v":
                    for (sp, sregs) in self.stores:
                        if r in sregs:
                            req(sp, 2)
            if need > self.pos:
                self._nop(need - self.pos)
            self.lines.append("    " + ln)
            kind = "trans" if is_trans else ("dl" if is_dl else "valu")
            for r in writes:
                if r[0] == "v":
                    self.vw[r] = (self.pos, kind, base)
                else:
                    self.sw[r] = self.pos
            self.pos += 1
            self.stores = [(sp, s) for (sp, s) in self.stores if self.pos - sp < 4]
            return
        if op.startswith("buffer_") or op.startswith("global_") or op.startswith("ds_") or op.startswith("flat_"):
            sreads = []
            for t in toks:
                for r in regs_of(t):
                    if r[0] == "s":
                        sreads.append(r)
            for r in sreads:
                if r in self.sw:
                    req(self.sw[r], 5)
            for t in toks:
                for r in regs_of(t):
                    if r[0] == "v" and r in self.vw and self.vw[r][1] in ("trans",):
                        req(self.vw[r][0], 1)
                    if r[0] == "v" and r in self.vw and self.vw[r][1] == "dl":
                        req(self.vw[r][0], 3)
            if need > self.pos:
                self._nop(need - self.pos)
            self.lines.append("    " + ln)
            wide = ("store" in op or op.startswith("ds_write")) and ("x3" in op or "x4" in op or "b96" in op or "b128" in op)
            if wide:
                if op.startswith("ds_write"):
                    data = toks[1]
                elif op.startswith("global_store"):
                    data = toks[1]
                else:
                    data = toks[0]
                self.stores.append((self.pos, set(regs_of(data))))
            if "load" in op or op.startswith("ds_read") or "permute" in op or "swizzle" in op:
                for r in regs_of(toks[0]):
                    self.vw.pop(r, None)
            self.pos += 1
            return
        if op == "s_nop":
            self.lines.append("    " + ln)
            self.pos += int(toks[0], 0) + 1
            return
        for t in toks:
            for r in regs_of(t):
                if r[0] == "s" and r in self.sw:
                    req(self.sw[r], 1)
        if need > self.pos:
            self._nop(need - self.pos)
        self.lines.append("    " + ln)
        self.pos += 1

    def text(self):
        return "\n".join(self.lines) + "\n"


def wave_allreduce(e, op, v, t0, t1):
    for r in (8, 4, 2, 1):
        e("%s_dpp %s, %s, %s row_ror:%d row_mask:0xf bank_mask:0xf" % (op, v, v, v, r))
    e("v_mov_b32 %s, %s" % (t0, v))
    e("v_permlane16_swap_b32 %s, %s" % (v, t0))
    e("%s %s, %s, %s" % (op, v, v, t0))
    e("v_mov_b32 %s, %s" % (t0, v))
    e("v_permlane32_swap_b32 %s, %s" % (v, t0))
    e("%s %s, %s, %s" % (op, v, v, t0))


def bf16_round(e, dst, src):
    e("v_cvt_pk_bf16_f32 %s, %s, %s" % (dst, src, src))
    e("v_lshlrev_b32 %s, 16, %s" % (dst, dst))


def bf16_pattern(e, dst, src):
    e("v_cvt_pk_bf16_f32 %s, %s, 0" % (dst, src))


def fdiv(e, dst, num, den, t0, t1):
    e("v_rcp_f32 %s, %s" % (t0, den))
    e("v_mul_f32 %s, %s, %s" % (dst, num, t0))
    e("v_fma_f32 %s, -%s, %s, %s" % (t1, dst, den, num))
    e("v_fma_f32 %s, %s, %s, %s" % (dst, t1, t0, dst))
```

```python
import sys, os
sys.path.insert(0, os.path.dirname(__file__))
from asmgen import Emitter, wave_allreduce, bf16_round, bf16_pattern, fdiv

DEBUG = bool(os.environ.get("GEN_DEBUG"))
KVMOD = os.environ.get("GEN_KVMOD", "")
LOG2E = "0x3fb8aa3b"
SCALE = "0x3db504f3"
EPS = "0x3727c5ac"
INV512 = "0x3b000000"
KKAPPA = "0x3d372713"
KBETA = "0x3f4c422a"

WS_O = 0x0
WS_ML = 0x20000
WS_P = 0x40000
WS_H = 0x50000
WS_ACT = 0x51000
WS_USED = 0x60000


def srd(e, d, lo, hi, nbytes):
    e("s_mov_b32 s%d, s%d" % (d, lo))
    e("s_mov_b32 s%d, s%d" % (d + 1, hi))
    e("s_mov_b32 s%d, 0x%x" % (d + 2, nbytes))
    e("s_mov_b32 s%d, 0x00020000" % (d + 3))


def decode_hc(e):
    e("s_and_b32 s37, s2, 7")
    e("s_lshr_b32 s38, s2, 3")
    e("s_and_b32 s38, s38, 3")
    e("s_lshl_b32 s34, s37, 2")
    e("s_add_u32 s34, s34, s38")
    e("s_lshr_b32 s35, s2, 5")


def lds_sum32(e, dst, vaddr, base, r0):
    for half in range(2):
        for g in range(16):
            e("ds_read_b32 v%d, %s offset:%d" % (r0 + g, vaddr, base + 512 * (half * 16 + g)))
        e("s_waitcnt lgkmcnt(0)")
        for g in range(16):
            if half == 0 and g == 0:
                e("v_mov_b32 %s, v%d" % (dst, r0))
            else:
                e("v_add_f32 %s, %s, v%d" % (dst, dst, r0 + g))


LDS_LN = 0
LDS_Q = 16384
LDS_QB = 32768
LDS_M = 33024
LDS_L = 33280
LDS_A_TOTAL = 36864

B0, B1, B2 = 64, 128, 192


def kv_loads(e, srd_base, buf, tile):
    for jg in range(4):
        e("s_mov_b32 s40, 0x%x" % (tile * 131072 + jg * 4096))
        for j4 in range(4):
            j = jg * 4 + j4
            e("buffer_load_dwordx4 v[%d:%d], v2, s[%d:%d], s40 offen offset:%d%s"
              % (buf + 4 * j, buf + 4 * j + 3, srd_base, srd_base + 3, j4 * 1024, KVMOD))


def k_step(e, buf, sc, vm_wait, next_issue):
    e("s_waitcnt vmcnt(%d)" % vm_wait)
    for ee in range(4):
        for j in range(16):
            if ee == 0:
                e("v_dot2_f32_bf16 v%d, v%d, v32, 0" % (16 + j, buf + 4 * j))
            else:
                e("v_dot2c_f32_bf16 v%d, v%d, v%d" % (16 + j, buf + 4 * j + ee, 32 + ee))
    next_issue()
    for j in range(8):
        e("v_add_f32_dpp v%d, v%d, v%d row_ror:8 row_mask:0xf bank_mask:0x3" % (16 + j, 16 + j, 16 + j))
        e("v_add_f32_dpp v%d, v%d, v%d row_ror:8 row_mask:0xf bank_mask:0xc" % (16 + j, 24 + j, 24 + j))
    for j in range(4):
        e("v_add_f32_dpp v%d, v%d, v%d row_half_mirror row_mask:0xf bank_mask:0x5" % (16 + j, 16 + j, 16 + j))
        e("v_add_f32_dpp v%d, v%d, v%d row_half_mirror row_mask:0xf bank_mask:0xa" % (16 + j, 20 + j, 20 + j))
    for j in range(4):
        e("v_add_f32_dpp v%d, v%d, v%d quad_perm:[1,0,3,2] row_mask:0xf bank_mask:0xf" % (16 + j, 16 + j, 16 + j))
    for j in range(4):
        e("v_add_f32_dpp v%d, v%d, v%d quad_perm:[2,3,0,1] row_mask:0xf bank_mask:0xf" % (16 + j, 16 + j, 16 + j))
    e("v_cndmask_b32 v%d, v16, v17, s[44:45]" % sc)
    e("v_cndmask_b32 v%d, v%d, v18, s[46:47]" % (sc, sc))
    e("v_cndmask_b32 v%d, v%d, v19, s[48:49]" % (sc, sc))
    bf16_round(e, "v%d" % sc, "v%d" % sc)
    e("v_mul_f32 v%d, %s, v%d" % (sc, SCALE, sc))
    bf16_round(e, "v%d" % sc, "v%d" % sc)


def v_step(e, buf, tile, vm_wait, next_issue):
    e("s_waitcnt vmcnt(%d)" % vm_wait)
    plo, phi = 40 + 2 * tile, 41 + 2 * tile
    for j in range(16):
        for ee in range(4):
            e("v_dot2c_f32_bf16_dpp v%d, v%d, v%d row_newbcast:%d row_mask:0xf bank_mask:0xf"
              % (48 + 2 * ee, plo, buf + 4 * j + ee, j))
            e("v_dot2c_f32_bf16_dpp v%d, v%d, v%d row_newbcast:%d row_mask:0xf bank_mask:0xf"
              % (49 + 2 * ee, phi, buf + 4 * j + ee, j))
    next_issue()


def gen_attn_kernel():
    e = Emitter()
    e("s_cmp_ge_u32 s2, 256")
    e("s_cbranch_scc1 L_attn_end")
    e("s_load_dwordx8 s[24:31], s[0:1], 0")
    e("s_load_dwordx2 s[32:33], s[0:1], 88")
    decode_hc(e)
    e("v_and_b32 v1, 63, v0")
    e("v_lshrrev_b32 v5, 6, v0")
    e("v_readfirstlane_b32 s36, v5")
    e("s_lshl_b32 s39, s35, 19")
    e("v_lshlrev_b32 v6, 14, v5")
    e("v_lshlrev_b32 v2, 4, v1")
    e("v_add_u32 v2, v2, v6")
    e("v_add_u32 v2, s39, v2")
    e("v_lshrrev_b32 v7, 4, v1")
    e("v_lshlrev_b32 v8, 6, v5")
    e("v_add_u32 v7, v7, v8")
    e("v_lshlrev_b32 v3, 13, v7")
    e("v_and_b32 v6, 15, v1")
    e("v_lshlrev_b32 v6, 4, v6")
    e("v_add_u32 v3, v3, v6")
    e("s_lshl_b32 s39, s34, 8")
    e("v_add_u32 v3, s39, v3")
    e("v_lshlrev_b32 v4, 4, v1")
    e("s_mov_b32 s44, 0x22222222")
    e("s_mov_b32 s45, 0x22222222")
    e("s_mov_b32 s46, 0x44444444")
    e("s_mov_b32 s47, 0x44444444")
    e("s_mov_b32 s48, 0x88888888")
    e("s_mov_b32 s49, 0x88888888")
    e("s_waitcnt lgkmcnt(0)")
    srd(e, 4, 24, 25, 1024)
    e("s_lshl_b32 s39, s34, 22")
    e("s_add_u32 s26, s26, s39")
    e("s_addc_u32 s27, s27, 0")
    e("s_add_u32 s28, s28, s39")
    e("s_addc_u32 s29, s29, 0")
    srd(e, 8, 26, 27, 0x400000)
    srd(e, 12, 28, 29, 0x400000)
    srd(e, 16, 30, 31, 0x400000)
    srd(e, 20, 32, 33, WS_USED)
    e("buffer_load_dwordx4 v[8:11], v4, s[4:7], 0 offen")
    for it in range(16):
        e("s_mov_b32 s40, 0x%x" % (it * 32768))
        e("buffer_load_dwordx4 v[%d:%d], v3, s[16:19], s40 offen" % (B2 + 4 * it, B2 + 4 * it + 3))
    kv_loads(e, 8, B0, 0)
    kv_loads(e, 8, B1, 1)
    e("s_waitcnt vmcnt(48)")
    for k in range(4):
        e("v_lshlrev_b32 v%d, 16, v%d" % (12 + 2 * k, 8 + k))
        e("v_and_b32 v%d, 0xffff0000, v%d" % (13 + 2 * k, 8 + k))
    e("v_add_f32 v20, v12, v13")
    for k in range(2, 8):
        e("v_add_f32 v20, v20, v%d" % (12 + k))
    wave_allreduce(e, "v_add_f32", "v20", "v21", "v22")
    e("v_mul_f32 v20, %s, v20" % INV512)
    e("v_mov_b32 v23, 0")
    for k in range(8):
        e("v_sub_f32 v24, v%d, v20" % (12 + k))
        e("v_fma_f32 v23, v24, v24, v23")
    wave_allreduce(e, "v_add_f32", "v23", "v21", "v22")
    e("v_mul_f32 v23, %s, v23" % INV512)
    bf16_round(e, "v24", "v20")
    bf16_round(e, "v25", "v23")
    e("v_add_f32 v25, %s, v25" % EPS)
    bf16_round(e, "v25", "v25")
    e("v_sqrt_f32 v25, v25")
    bf16_round(e, "v25", "v25")
    for k in range(8):
        e("v_sub_f32 v26, v%d, v24" % (12 + k))
        bf16_round(e, "v26", "v26")
        fdiv(e, "v27", "v26", "v25", "v28", "v29")
        bf16_pattern(e, "v%d" % (40 + k), "v27")
    e("v_lshlrev_b32 v26, 11, v5")
    e("v_lshlrev_b32 v27, 5, v1")
    e("v_add_u32 v26, v26, v27")
    e("ds_write_b128 v26, v[40:43] offset:%d" % LDS_LN)
    e("ds_write_b128 v26, v[44:47] offset:%d" % (LDS_LN + 16))
    e("v_lshlrev_b32 v59, 2, v7")
    e("v_lshlrev_b32 v58, 11, v5")
    e("v_add_u32 v59, v59, v58")
    e("s_waitcnt lgkmcnt(0)")
    for it in range(16):
        e("ds_read_b32 v%d, v59 offset:%d" % (16 + it, LDS_LN + 16 * it))
    e("s_waitcnt vmcnt(32) lgkmcnt(0)")
    for it in range(16):
        e("v_lshlrev_b32 v57, 16, v%d" % (16 + it))
        for ee in range(4):
            w = B2 + 4 * it + ee
            if it == 0:
                e("v_dot2_f32_bf16 v%d, v%d, v%d, 0" % (48 + 2 * ee, 16 + it, w))
                e("v_dot2_f32_bf16 v%d, v57, v%d, 0" % (49 + 2 * ee, w))
            else:
                e("v_dot2c_f32_bf16 v%d, v%d, v%d" % (48 + 2 * ee, 16 + it, w))
                e("v_dot2c_f32_bf16 v%d, v57, v%d" % (49 + 2 * ee, w))
    kv_loads(e, 8, B2, 2)
    e("v_lshlrev_b32 v26, 5, v0")
    e("ds_write_b128 v26, v[48:51] offset:%d" % LDS_Q)
    e("ds_write_b128 v26, v[52:55] offset:%d" % (LDS_Q + 16))
    e("s_waitcnt lgkmcnt(0)")
    e("s_barrier")
    e("s_cmp_ge_u32 s36, 2")
    e("s_cbranch_scc1 L_attn_q_done")
    e("v_lshlrev_b32 v59, 2, v0")
    lds_sum32(e, "v57", "v59", LDS_Q, 16)
    e("v_cvt_pk_bf16_f32 v57, v57, 0")
    e("v_lshlrev_b32 v28, 1, v0")
    e("ds_write_b16 v28, v57 offset:%d" % LDS_QB)
    e("s_waitcnt lgkmcnt(0)")
    e.label("L_attn_q_done")
    e("s_barrier")
    e("ds_read_b128 v[32:35], v6 offset:%d" % LDS_QB)
    e("s_waitcnt lgkmcnt(0)")
    if DEBUG:
        e("s_load_dwordx2 s[50:51], s[0:1], 80")
        e("s_waitcnt lgkmcnt(0)")
        srd(e, 52, 50, 51, 256)
        e("s_cmp_lg_u32 s2, 0")
        e("s_cbranch_scc1 L_dbg_skip")
        e("v_cmp_gt_u32 vcc, 16, v0")
        e("s_and_saveexec_b64 s[42:43], vcc")
        e("v_lshlrev_b32 v58, 4, v0")
        e("buffer_store_dwordx4 v[32:35], v58, s[52:55], 0 offen")
        e("s_or_b64 exec, exec, s[42:43]")
        e.label("L_dbg_skip")
    k_step(e, B0, 36, 32, lambda: kv_loads(e, 8, B0, 3))
    k_step(e, B1, 37, 32, lambda: kv_loads(e, 12, B1, 0))
    k_step(e, B2, 38, 32, lambda: kv_loads(e, 12, B2, 1))
    k_step(e, B0, 39, 32, lambda: kv_loads(e, 12, B0, 2))
    e("v_max3_f32 v57, v36, v37, v38")
    e("v_max_f32 v57, v57, v39")
    wave_allreduce(e, "v_max_f32", "v57", "v58", "v59")
    e("v_mov_b32 v56, 0")
    for i in range(4):
        e("v_sub_f32 v58, v%d, v57" % (36 + i))
        e("v_mul_f32 v58, %s, v58" % LOG2E)
        e("v_exp_f32 v58, v58")
        e("v_cvt_pk_bf16_f32 v%d, v58, 0" % (40 + 2 * i))
        e("v_cvt_pk_bf16_f32 v%d, 0, v58" % (41 + 2 * i))
        e("v_add_f32 v56, v56, v%d" % (41 + 2 * i))
    for k in range(8):
        e("v_mov_b32 v%d, 0" % (48 + k))
    v_step(e, B1, 0, 32, lambda: kv_loads(e, 12, B1, 3))
    v_step(e, B2, 1, 32, lambda: None)
    v_step(e, B0, 2, 16, lambda: None)
    v_step(e, B1, 3, 0, lambda: None)
    e("s_lshl_b32 s39, s36, 2")
    e("v_mov_b32 v26, s39")
    e("ds_write_b32 v26, v57 offset:%d" % LDS_M)
    e("s_waitcnt lgkmcnt(0)")
    e("s_barrier")
    e("v_mov_b32 v26, 0")
    e("ds_read_b128 v[16:19], v26 offset:%d" % LDS_M)
    e("ds_read_b128 v[20:23], v26 offset:%d" % (LDS_M + 16))
    e("s_waitcnt lgkmcnt(0)")
    e("v_max3_f32 v24, v16, v17, v18")
    e("v_max3_f32 v24, v24, v19, v20")
    e("v_max3_f32 v24, v24, v21, v22")
    e("v_max_f32 v24, v24, v23")
    e("v_sub_f32 v25, v57, v24")
    e("v_mul_f32 v25, %s, v25" % LOG2E)
    e("v_exp_f32 v25, v25")
    for k in range(8):
        e("v_mul_f32 v%d, v%d, v25" % (48 + k, 48 + k))
    e("v_mul_f32 v56, v56, v25")
    e("v_lshlrev_b32 v26, 5, v0")
    e("ds_write_b128 v26, v[48:51] offset:%d" % LDS_Q)
    e("ds_write_b128 v26, v[52:55] offset:%d" % (LDS_Q + 16))
    e("v_lshlrev_b32 v59, 2, v0")
    e("ds_write_b32 v59, v56 offset:%d" % LDS_L)
    e("s_waitcnt lgkmcnt(0)")
    e("s_barrier")
    e("s_lshl_b32 s39, s34, 3")
    e("s_add_u32 s39, s39, s35")
    e("s_cmp_eq_u32 s36, 2")
    e("s_cbranch_scc1 L_attn_sumL")
    e("s_cmp_ge_u32 s36, 2")
    e("s_cbranch_scc1 L_attn_end")
    lds_sum32(e, "v57", "v59", LDS_Q, 16)
    e("s_lshl_b32 s40, s39, 9")
    e("v_add_u32 v28, s40, v59")
    e("buffer_store_dword v57, v28, s[20:23], 0 offen offset:%d" % WS_O)
    e("s_branch L_attn_end")
    e.label("L_attn_sumL")
    e("v_lshlrev_b32 v26, 5, v1")
    e("ds_read_b128 v[16:19], v26 offset:%d" % LDS_L)
    e("ds_read_b128 v[20:23], v26 offset:%d" % (LDS_L + 16))
    e("s_waitcnt lgkmcnt(0)")
    e("v_add_f32 v25, v16, v17")
    for k in range(2, 8):
        e("v_add_f32 v25, v25, v%d" % (16 + k))
    wave_allreduce(e, "v_add_f32", "v25", "v26", "v27")
    e("v_mov_b32 v26, 0")
    e("s_lshl_b32 s40, s39, 3")
    e("s_add_u32 s40, s40, 0x%x" % WS_ML)
    e("v_mov_b32 v26, s40")
    e("v_cmp_eq_u32 vcc, 0, v1")
    e("s_and_saveexec_b64 s[42:43], vcc")
    e("buffer_store_dwordx2 v[24:25], v26, s[20:23], 0 offen")
    e("s_or_b64 exec, exec, s[42:43]")
    e.label("L_attn_end")
    e("s_endpgm")
    return e.text()


LDS_OH = 0
LDS_R = 1024
LDS_B_TOTAL = 8192


def gen_wo_kernel():
    e = Emitter()
    e("s_cmp_ge_u32 s2, 256")
    e("s_cbranch_scc1 L_wo_end")
    e("s_load_dwordx2 s[24:25], s[0:1], 32")
    e("s_load_dwordx2 s[32:33], s[0:1], 88")
    decode_hc(e)
    e("v_and_b32 v1, 63, v0")
    e("v_lshrrev_b32 v5, 3, v0")
    e("v_lshlrev_b32 v2, 10, v5")
    e("v_and_b32 v6, 7, v0")
    e("v_lshlrev_b32 v6, 4, v6")
    e("v_add_u32 v2, v2, v6")
    e("s_lshl_b32 s39, s34, 17")
    e("s_lshl_b32 s40, s35, 7")
    e("s_add_u32 s39, s39, s40")
    e("v_add_u32 v2, s39, v2")
    e("v_and_b32 v7, 127, v0")
    e("v_lshlrev_b32 v3, 2, v7")
    e("s_lshl_b32 s39, s34, 12")
    e("v_add_u32 v3, s39, v3")
    e("s_lshl_b32 s39, s34, 6")
    e("s_add_u32 s39, s39, 0x%x" % WS_ML)
    e("v_mov_b32 v4, s39")
    e("s_waitcnt lgkmcnt(0)")
    srd(e, 4, 24, 25, 0x400000)
    srd(e, 20, 32, 33, WS_USED)
    for it in range(4):
        e("s_mov_b32 s40, 0x%x" % (it * 32768))
        e("buffer_load_dwordx4 v[%d:%d], v2, s[4:7], s40 offen" % (64 + 4 * it, 67 + 4 * it))
    for k in range(4):
        e("buffer_load_dwordx4 v[%d:%d], v4, s[20:23], 0 offen offset:%d" % (16 + 4 * k, 19 + 4 * k, 16 * k))
    for c in range(8):
        e("buffer_load_dword v%d, v3, s[20:23], 0 offen offset:%d" % (32 + c, WS_O + 512 * c))
    e("s_waitcnt vmcnt(0)")
    e("v_max3_f32 v40, v16, v18, v20")
    e("v_max3_f32 v40, v40, v22, v24")
    e("v_max3_f32 v40, v40, v26, v28")
    e("v_max_f32 v40, v40, v30")
    e("v_mov_b32 v41, 0")
    e("v_mov_b32 v42, 0")
    for c in range(8):
        e("v_sub_f32 v43, v%d, v40" % (16 + 2 * c))
        e("v_mul_f32 v43, %s, v43" % LOG2E)
        e("v_exp_f32 v43, v43")
        e("v_fma_f32 v41, v43, v%d, v41" % (17 + 2 * c))
        e("v_fma_f32 v42, v43, v%d, v42" % (32 + c))
    fdiv(e, "v43", "v42", "v41", "v44", "v45")
    bf16_pattern(e, "v43", "v43")
    e("v_lshlrev_b32 v44, 2, v7")
    e("ds_write_b32 v44, v43 offset:%d" % LDS_OH)
    e("s_waitcnt lgkmcnt(0)")
    e("s_barrier")
    e("v_lshlrev_b32 v44, 2, v5")
    for it in range(4):
        e("ds_read_b32 v%d, v44 offset:%d" % (46 + it, LDS_OH + 128 * it))
    e("s_waitcnt lgkmcnt(0)")
    for it in range(4):
        e("v_lshlrev_b32 v50, 16, v%d" % (46 + it))
        for ee in range(4):
            w = 64 + 4 * it + ee
            if it == 0:
                e("v_dot2_f32_bf16 v%d, v%d, v%d, 0" % (52 + 2 * ee, 46 + it, w))
                e("v_dot2_f32_bf16 v%d, v50, v%d, 0" % (53 + 2 * ee, w))
            else:
                e("v_dot2c_f32_bf16 v%d, v%d, v%d" % (52 + 2 * ee, 46 + it, w))
                e("v_dot2c_f32_bf16 v%d, v50, v%d" % (53 + 2 * ee, w))
    for k in range(8):
        e("v_add_f32_dpp v%d, v%d, v%d row_ror:8 row_mask:0xf bank_mask:0xf" % (52 + k, 52 + k, 52 + k))
    e("v_lshrrev_b32 v44, 4, v0")
    e("v_lshlrev_b32 v44, 8, v44")
    e("v_lshlrev_b32 v45, 1, v6")
    e("v_add_u32 v44, v44, v45")
    e("ds_write_b128 v44, v[52:55] offset:%d" % LDS_R)
    e("ds_write_b128 v44, v[56:59] offset:%d" % (LDS_R + 16))
    e("s_waitcnt lgkmcnt(0)")
    e("s_barrier")
    e("v_cmp_gt_u32 vcc, 64, v0")
    e("s_and_saveexec_b64 s[42:43], vcc")
    e("s_cbranch_execz L_wo_restore")
    e("v_lshlrev_b32 v44, 2, v0")
    for g in range(16):
        e("ds_read_b32 v%d, v44 offset:%d" % (16 + g, LDS_R + 256 * g))
    e("s_waitcnt lgkmcnt(0)")
    e("v_add_f32 v45, v16, v17")
    for g in range(2, 16):
        e("v_add_f32 v45, v45, v%d" % (16 + g))
    e("s_lshl_b32 s39, s34, 11")
    e("s_lshl_b32 s40, s35, 8")
    e("s_add_u32 s39, s39, s40")
    e("s_add_u32 s39, s39, 0x%x" % WS_P)
    e("v_add_u32 v44, s39, v44")
    e("buffer_store_dword v45, v44, s[20:23], 0 offen")
    e.label("L_wo_restore")
    e("s_or_b64 exec, exec, s[42:43]")
    e.label("L_wo_end")
    e("s_endpgm")
    return e.text()


LDS_C_LN = 0
LDS_C_RED = 2048
LDS_C_R = 4096
LDS_C_TOTAL = 8192
NWG_C = 112


def block_allreduce_add(e, v, t0, t1, lds_off, nwaves):
    wave_allreduce(e, "v_add_f32", v, t0, t1)
    e("v_lshlrev_b32 %s, 2, v5" % t0)
    e("ds_write_b32 %s, %s offset:%d" % (t0, v, lds_off))
    e("s_waitcnt lgkmcnt(0)")
    e("s_barrier")
    e("v_mov_b32 %s, 0" % t0)
    e("ds_read_b128 v[60:63], %s offset:%d" % (t0, lds_off))
    e("s_waitcnt lgkmcnt(0)")
    e("v_add_f32 %s, v60, v61" % v)
    e("v_add_f32 %s, %s, v62" % (v, v))
    e("v_add_f32 %s, %s, v63" % (v, v))


def gen_ffn1_kernel():
    e = Emitter()
    e("s_cmp_ge_u32 s2, %d" % NWG_C)
    e("s_cbranch_scc1 L_ffn1_end")
    e("s_load_dwordx2 s[24:25], s[0:1], 0")
    e("s_load_dwordx4 s[28:31], s[0:1], 48")
    e("s_load_dwordx2 s[32:33], s[0:1], 88")
    e("v_and_b32 v1, 63, v0")
    e("v_lshrrev_b32 v5, 6, v0")
    e("v_lshrrev_b32 v6, 1, v0")
    e("v_mul_u32_u24 v2, 3584, v6")
    e("v_and_b32 v7, 1, v0")
    e("v_lshlrev_b32 v7, 4, v7")
    e("v_add_u32 v2, v2, v7")
    e("s_lshl_b32 s39, s2, 5")
    e("v_add_u32 v2, s39, v2")
    e("v_lshlrev_b32 v3, 3, v0")
    e("v_lshlrev_b32 v4, 2, v0")
    e("s_waitcnt lgkmcnt(0)")
    srd(e, 4, 24, 25, 1024)
    srd(e, 8, 28, 29, 512 * 3584)
    srd(e, 12, 30, 31, 512 * 3584)
    srd(e, 20, 32, 33, WS_USED)
    for it in range(4):
        e("s_mov_b32 s40, 0x%x" % (it * 128 * 3584))
        e("buffer_load_dwordx4 v[%d:%d], v2, s[8:11], s40 offen" % (64 + 4 * it, 67 + 4 * it))
        e("buffer_load_dwordx4 v[%d:%d], v2, s[12:15], s40 offen" % (80 + 4 * it, 83 + 4 * it))
    for hh in range(32):
        e("s_mov_b32 s40, 0x%x" % (WS_P + hh * 2048))
        e("buffer_load_dwordx2 v[%d:%d], v3, s[20:23], s40 offen" % (96 + 2 * hh, 97 + 2 * hh))
    e("buffer_load_dword v8, v4, s[4:7], 0 offen")
    e("s_waitcnt vmcnt(0)")
    e("v_add_f32 v10, v96, v98")
    e("v_add_f32 v11, v97, v99")
    for hh in range(2, 32):
        e("v_add_f32 v10, v10, v%d" % (96 + 2 * hh))
        e("v_add_f32 v11, v11, v%d" % (97 + 2 * hh))
    bf16_round(e, "v10", "v10")
    bf16_round(e, "v11", "v11")
    e("v_lshlrev_b32 v12, 16, v8")
    e("v_and_b32 v13, 0xffff0000, v8")
    e("v_add_f32 v10, v12, v10")
    e("v_add_f32 v11, v13, v11")
    bf16_round(e, "v10", "v10")
    bf16_round(e, "v11", "v11")
    e("s_mov_b32 s41, 0x%x" % WS_H)
    e("s_cmp_lg_u32 s2, 0")
    e("s_cbranch_scc1 L_ffn1_noh")
    e("buffer_store_dwordx2 v[10:11], v3, s[20:23], s41 offen")
    e.label("L_ffn1_noh")
    e("v_add_f32 v14, v10, v11")
    block_allreduce_add(e, "v14", "v15", "v16", LDS_C_RED, 4)
    e("v_mul_f32 v14, %s, v14" % INV512)
    e("v_sub_f32 v15, v10, v14")
    e("v_sub_f32 v16, v11, v14")
    e("v_mul_f32 v17, v15, v15")
    e("v_fma_f32 v17, v16, v16, v17")
    block_allreduce_add(e, "v17", "v15", "v16", LDS_C_RED + 16, 4)
    e("v_mul_f32 v17, %s, v17" % INV512)
    bf16_round(e, "v18", "v14")
    bf16_round(e, "v19", "v17")
    e("v_add_f32 v19, %s, v19" % EPS)
    bf16_round(e, "v19", "v19")
    e("v_sqrt_f32 v19, v19")
    bf16_round(e, "v19", "v19")
    for k in range(2):
        e("v_sub_f32 v20, v%d, v18" % (10 + k))
        bf16_round(e, "v20", "v20")
        fdiv(e, "v21", "v20", "v19", "v22", "v23")
        bf16_pattern(e, "v%d" % (24 + k), "v21")
    e("ds_write_b64 v3, v[24:25] offset:%d" % LDS_C_LN)
    e("s_waitcnt lgkmcnt(0)")
    e("s_barrier")
    e("v_lshlrev_b32 v26, 2, v6")
    for it in range(4):
        e("ds_read_b32 v%d, v26 offset:%d" % (28 + it, LDS_C_LN + 512 * it))
    e("s_waitcnt lgkmcnt(0)")
    for it in range(4):
        e("v_lshlrev_b32 v27, 16, v%d" % (28 + it))
        for m in range(2):
            for ee in range(4):
                w = 64 + 16 * m + 4 * it + ee
                a = 32 + 8 * m + 2 * ee
                if it == 0:
                    e("v_dot2_f32_bf16 v%d, v%d, v%d, 0" % (a, 28 + it, w))
                    e("v_dot2_f32_bf16 v%d, v27, v%d, 0" % (a + 1, w))
                else:
                    e("v_dot2c_f32_bf16 v%d, v%d, v%d" % (a, 28 + it, w))
                    e("v_dot2c_f32_bf16 v%d, v27, v%d" % (a + 1, w))
    for k in range(16):
        e("v_add_f32_dpp v%d, v%d, v%d quad_perm:[2,3,0,1] row_mask:0xf bank_mask:0xf" % (32 + k, 32 + k, 32 + k))
    for k in range(16):
        e("v_add_f32_dpp v%d, v%d, v%d row_ror:4 row_mask:0xf bank_mask:0xf" % (32 + k, 32 + k, 32 + k))
    for k in range(16):
        e("v_add_f32_dpp v%d, v%d, v%d row_ror:8 row_mask:0xf bank_mask:0xf" % (32 + k, 32 + k, 32 + k))
    e("v_lshrrev_b32 v26, 4, v0")
    e("v_lshlrev_b32 v26, 7, v26")
    e("v_lshlrev_b32 v27, 2, v7")
    e("v_add_u32 v26, v26, v27")
    for k in range(4):
        e("ds_write_b128 v26, v[%d:%d] offset:%d" % (32 + 4 * k, 35 + 4 * k, LDS_C_R + 16 * k))
    e("s_waitcnt lgkmcnt(0)")
    e("s_barrier")
    e("v_cmp_gt_u32 vcc, 16, v0")
    e("s_and_saveexec_b64 s[42:43], vcc")
    e("s_cbranch_execz L_ffn1_restore")
    e("v_lshrrev_b32 v26, 3, v0")
    e("v_lshlrev_b32 v26, 6, v26")
    e("v_and_b32 v27, 7, v0")
    e("v_lshlrev_b32 v27, 2, v27")
    e("v_add_u32 v26, v26, v27")
    for k in range(16):
        e("ds_read_b32 v%d, v26 offset:%d" % (96 + k, LDS_C_R + 128 * k))
        e("ds_read_b32 v%d, v26 offset:%d" % (112 + k, LDS_C_R + 128 * k + 32))
    e("s_waitcnt lgkmcnt(0)")
    e("v_add_f32 v28, v96, v97")
    e("v_add_f32 v29, v112, v113")
    for k in range(2, 16):
        e("v_add_f32 v28, v28, v%d" % (96 + k))
        e("v_add_f32 v29, v29, v%d" % (112 + k))
    bf16_round(e, "v28", "v28")
    bf16_round(e, "v29", "v29")
    e("v_mul_f32 v30, v28, v28")
    e("v_mul_f32 v30, v30, v28")
    e("s_mov_b32 s40, %s" % KKAPPA)
    e("v_fma_f32 v30, v30, s40, v28")
    e("v_mul_f32 v30, %s, v30" % KBETA)
    e("v_mul_f32 v30, 0xc038aa3b, v30")
    e("v_exp_f32 v30, v30")
    e("v_add_f32 v30, 1.0, v30")
    fdiv(e, "v31", "v28", "v30", "v32", "v33")
    bf16_round(e, "v31", "v31")
    e("v_mul_f32 v31, v31, v29")
    bf16_pattern(e, "v31", "v31")
    e("v_lshlrev_b32 v26, 2, v0")
    e("s_lshl_b32 s39, s2, 6")
    e("s_add_u32 s39, s39, 0x%x" % WS_ACT)
    e("v_add_u32 v26, s39, v26")
    e("buffer_store_dword v31, v26, s[20:23], 0 offen")
    e.label("L_ffn1_restore")
    e("s_or_b64 exec, exec, s[42:43]")
    e.label("L_ffn1_end")
    e("s_endpgm")
    return e.text()


LDS_D_R = 0
LDS_D_TOTAL = 4096
NWG_D = 64


def gen_ffn2_kernel():
    e = Emitter()
    e("s_cmp_ge_u32 s2, %d" % NWG_D)
    e("s_cbranch_scc1 L_ffn2_end")
    e("s_load_dwordx2 s[24:25], s[0:1], 64")
    e("s_load_dwordx2 s[26:27], s[0:1], 72")
    e("s_load_dwordx2 s[32:33], s[0:1], 88")
    e("v_and_b32 v1, 63, v0")
    e("v_lshlrev_b32 v2, 10, v0")
    e("s_lshl_b32 s39, s2, 4")
    e("v_add_u32 v2, s39, v2")
    e("v_lshlrev_b32 v3, 2, v0")
    e("s_waitcnt lgkmcnt(0)")
    srd(e, 4, 24, 25, 1792 * 1024)
    srd(e, 8, 26, 27, 1024)
    srd(e, 20, 32, 33, WS_USED)
    for it in range(7):
        e("s_mov_b32 s40, 0x%x" % (it * 262144))
        e("buffer_load_dwordx4 v[%d:%d], v2, s[4:7], s40 offen" % (64 + 4 * it, 67 + 4 * it))
    for it in range(7):
        e("s_mov_b32 s40, 0x%x" % (WS_ACT + it * 1024))
        e("buffer_load_dword v%d, v3, s[20:23], s40 offen" % (8 + it))
    e("v_and_b32 v4, 7, v0")
    e("v_lshlrev_b32 v4, 2, v4")
    e("s_lshl_b32 s39, s2, 5")
    e("s_add_u32 s39, s39, 0x%x" % WS_H)
    e("v_add_u32 v4, s39, v4")
    e("buffer_load_dword v15, v4, s[20:23], 0 offen")
    e("s_waitcnt vmcnt(0)")
    for it in range(7):
        e("v_lshlrev_b32 v16, 16, v%d" % (8 + it))
        for ee in range(4):
            w = 64 + 4 * it + ee
            if it == 0:
                e("v_dot2_f32_bf16 v%d, v%d, v%d, 0" % (32 + 2 * ee, 8 + it, w))
                e("v_dot2_f32_bf16 v%d, v16, v%d, 0" % (33 + 2 * ee, w))
            else:
                e("v_dot2c_f32_bf16 v%d, v%d, v%d" % (32 + 2 * ee, 8 + it, w))
                e("v_dot2c_f32_bf16 v%d, v16, v%d" % (33 + 2 * ee, w))
    for r in (1, 2, 4, 8):
        for k in range(8):
            e("v_add_f32_dpp v%d, v%d, v%d row_ror:%d row_mask:0xf bank_mask:0xf" % (32 + k, 32 + k, 32 + k, r))
    e("v_lshrrev_b32 v26, 4, v0")
    e("v_lshlrev_b32 v26, 5, v26")
    e("ds_write_b128 v26, v[32:35] offset:%d" % LDS_D_R)
    e("ds_write_b128 v26, v[36:39] offset:%d" % (LDS_D_R + 16))
    e("s_waitcnt lgkmcnt(0)")
    e("s_barrier")
    e("v_cmp_gt_u32 vcc, 8, v0")
    e("s_and_saveexec_b64 s[42:43], vcc")
    e("s_cbranch_execz L_ffn2_restore")
    e("v_lshlrev_b32 v26, 2, v0")
    for g in range(16):
        e("ds_read_b32 v%d, v26 offset:%d" % (40 + g, LDS_D_R + 32 * g))
    e("s_waitcnt lgkmcnt(0)")
    e("v_add_f32 v27, v40, v41")
    for g in range(2, 16):
        e("v_add_f32 v27, v27, v%d" % (40 + g))
    bf16_round(e, "v27", "v27")
    e("v_add_f32 v27, v15, v27")
    e("v_cvt_pk_bf16_f32 v27, v27, 0")
    e("v_lshlrev_b32 v28, 1, v0")
    e("s_lshl_b32 s39, s2, 4")
    e("v_add_u32 v28, s39, v28")
    e("buffer_store_short v27, v28, s[8:11], 0 offen")
    e.label("L_ffn2_restore")
    e("s_or_b64 exec, exec, s[42:43]")
    e.label("L_ffn2_end")
    e("s_endpgm")
    return e.text()


HEADER = """; Kernarg layout for this problem (96 bytes, ptrs only, base s[0:1]):
"""


def kd(name, vgpr, sgpr=102):
    acc = (vgpr + 3) // 4 * 4
    return """.amdhsa_kernel %s
  .amdhsa_next_free_vgpr %d
  .amdhsa_next_free_sgpr %d
  .amdhsa_accum_offset %d
  .amdhsa_group_segment_fixed_size 0
  .amdhsa_kernarg_size 96
  .amdhsa_user_sgpr_count 2
  .amdhsa_user_sgpr_kernarg_segment_ptr 1
  .amdhsa_system_sgpr_workgroup_id_x 1
.end_amdhsa_kernel
""" % (name, vgpr, sgpr, acc)


def main(out):
    s = HEADER
    s += "; @launch kernel=attn_kernel grid=(256,1,1) block=(512,1,1) lds=%d\n" % LDS_A_TOTAL
    s += "; @launch kernel=wo_kernel grid=(256,1,1) block=(256,1,1) lds=%d\n" % LDS_B_TOTAL
    s += "; @launch kernel=ffn1_kernel grid=(%d,1,1) block=(256,1,1) lds=%d\n" % (NWG_C, LDS_C_TOTAL)
    s += "; @launch kernel=ffn2_kernel grid=(%d,1,1) block=(256,1,1) lds=%d\n" % (NWG_D, LDS_D_TOTAL)
    s += '.amdgcn_target "amdgcn-amd-amdhsa--gfx950"\n.text\n'
    for name, body in (("attn_kernel", gen_attn_kernel()), ("wo_kernel", gen_wo_kernel()),
                       ("ffn1_kernel", gen_ffn1_kernel()), ("ffn2_kernel", gen_ffn2_kernel())):
        s += ".globl %s\n.p2align 8\n.type %s,@function\n%s:\n" % (name, name, name)
        s += body
    s += '.section .rodata,"a"\n'
    for name, v in (("attn_kernel", 256), ("wo_kernel", 80), ("ffn1_kernel", 160), ("ffn2_kernel", 96)):
        s += ".p2align 6\n" + kd(name, v, 64)
    open(out, "w").write(s)


if __name__ == "__main__":
    main(sys.argv[1] if len(sys.argv) > 1 else "sequential_preLN__mha_block_cached__geglu_ffn__decode.s")
```

```python
import sys, os
sys.path.insert(0, os.path.dirname(__file__))
from asmgen import Emitter, wave_allreduce, bf16_round, bf16_pattern, fdiv

DEBUG = bool(os.environ.get("GEN_DEBUG"))
KVMOD = os.environ.get("GEN_KVMOD", "")
WMOD = os.environ.get("GEN_WMOD", "")
LOG2E = "0x3fb8aa3b"
SCALE = "0x3db504f3"
EPS = "0x3727c5ac"
INV512 = "0x3b000000"
KKAPPA = "0x3d372713"
KBETA = "0x3f4c422a"

WS_O = 0x0
WS_ML = 0x20000
WS_P = 0x40000
WS_H = 0x50000
WS_ACT = 0x51000
WS_USED = 0x60000


def srd(e, d, lo, hi, nbytes):
    e("s_mov_b32 s%d, s%d" % (d, lo))
    e("s_mov_b32 s%d, s%d" % (d + 1, hi))
    e("s_mov_b32 s%d, 0x%x" % (d + 2, nbytes))
    e("s_mov_b32 s%d, 0x00020000" % (d + 3))


def decode_hc(e):
    e("s_and_b32 s37, s2, 7")
    e("s_lshr_b32 s38, s2, 3")
    e("s_and_b32 s38, s38, 3")
    e("s_lshl_b32 s34, s37, 2")
    e("s_add_u32 s34, s34, s38")
    e("s_lshr_b32 s35, s2, 5")


def lds_sum32(e, dst, vaddr, base, r0):
    for half in range(2):
        for g in range(16):
            e("ds_read_b32 v%d, %s offset:%d" % (r0 + g, vaddr, base + 512 * (half * 16 + g)))
        e("s_waitcnt lgkmcnt(0)")
        for g in range(16):
            if half == 0 and g == 0:
                e("v_mov_b32 %s, v%d" % (dst, r0))
            else:
                e("v_add_f32 %s, %s, v%d" % (dst, dst, r0 + g))


LDS_LN = 0
LDS_Q = 16384
LDS_QB = 32768
LDS_M = 33024
LDS_L = 33280
LDS_A_TOTAL = 36864

B0, B1, B2 = 64, 128, 192


def kv_loads(e, srd_base, buf, tile):
    for jg in range(4):
        e("s_mov_b32 s40, 0x%x" % (tile * 131072 + jg * 4096))
        for j4 in range(4):
            j = jg * 4 + j4
            e("buffer_load_dwordx4 v[%d:%d], v2, s[%d:%d], s40 offen offset:%d%s"
              % (buf + 4 * j, buf + 4 * j + 3, srd_base, srd_base + 3, j4 * 1024, KVMOD))


def k_step(e, buf, sc, vm_wait, next_issue):
    e("s_waitcnt vmcnt(%d)" % vm_wait)
    for ee in range(4):
        for j in range(16):
            if ee == 0:
                e("v_dot2_f32_bf16 v%d, v%d, v32, 0" % (16 + j, buf + 4 * j))
            else:
                e("v_dot2c_f32_bf16 v%d, v%d, v%d" % (16 + j, buf + 4 * j + ee, 32 + ee))
    next_issue()
    for j in range(8):
        e("v_add_f32_dpp v%d, v%d, v%d row_ror:8 row_mask:0xf bank_mask:0x3" % (16 + j, 16 + j, 16 + j))
        e("v_add_f32_dpp v%d, v%d, v%d row_ror:8 row_mask:0xf bank_mask:0xc" % (16 + j, 24 + j, 24 + j))
    for j in range(4):
        e("v_add_f32_dpp v%d, v%d, v%d row_half_mirror row_mask:0xf bank_mask:0x5" % (16 + j, 16 + j, 16 + j))
        e("v_add_f32_dpp v%d, v%d, v%d row_half_mirror row_mask:0xf bank_mask:0xa" % (16 + j, 20 + j, 20 + j))
    for j in range(4):
        e("v_add_f32_dpp v%d, v%d, v%d quad_perm:[1,0,3,2] row_mask:0xf bank_mask:0xf" % (16 + j, 16 + j, 16 + j))
    for j in range(4):
        e("v_add_f32_dpp v%d, v%d, v%d quad_perm:[2,3,0,1] row_mask:0xf bank_mask:0xf" % (16 + j, 16 + j, 16 + j))
    e("v_cndmask_b32 v%d, v16, v17, s[44:45]" % sc)
    e("v_cndmask_b32 v%d, v%d, v18, s[46:47]" % (sc, sc))
    e("v_cndmask_b32 v%d, v%d, v19, s[48:49]" % (sc, sc))
    bf16_round(e, "v%d" % sc, "v%d" % sc)
    e("v_mul_f32 v%d, %s, v%d" % (sc, SCALE, sc))
    bf16_round(e, "v%d" % sc, "v%d" % sc)


def v_step(e, buf, tile, vm_wait, next_issue):
    e("s_waitcnt vmcnt(%d)" % vm_wait)
    plo, phi = 40 + 2 * tile, 41 + 2 * tile
    for j in range(16):
        for ee in range(4):
            e("v_dot2c_f32_bf16_dpp v%d, v%d, v%d row_newbcast:%d row_mask:0xf bank_mask:0xf"
              % (48 + 2 * ee, plo, buf + 4 * j + ee, j))
            e("v_dot2c_f32_bf16_dpp v%d, v%d, v%d row_newbcast:%d row_mask:0xf bank_mask:0xf"
              % (49 + 2 * ee, phi, buf + 4 * j + ee, j))
    next_issue()


def gen_attn_kernel():
    e = Emitter()
    e("s_cmp_ge_u32 s2, 256")
    e("s_cbranch_scc1 L_attn_end")
    e("s_load_dwordx8 s[24:31], s[0:1], 0")
    e("s_load_dwordx2 s[32:33], s[0:1], 88")
    decode_hc(e)
    e("v_and_b32 v1, 63, v0")
    e("v_lshrrev_b32 v5, 6, v0")
    e("v_readfirstlane_b32 s36, v5")
    e("s_lshl_b32 s39, s35, 19")
    e("v_lshlrev_b32 v6, 14, v5")
    e("v_lshlrev_b32 v2, 4, v1")
    e("v_add_u32 v2, v2, v6")
    e("v_add_u32 v2, s39, v2")
    e("v_lshrrev_b32 v7, 4, v1")
    e("v_lshlrev_b32 v8, 6, v5")
    e("v_add_u32 v7, v7, v8")
    e("v_lshlrev_b32 v3, 13, v7")
    e("v_and_b32 v6, 15, v1")
    e("v_lshlrev_b32 v6, 4, v6")
    e("v_add_u32 v3, v3, v6")
    e("s_lshl_b32 s39, s34, 8")
    e("v_add_u32 v3, s39, v3")
    e("v_lshlrev_b32 v4, 4, v1")
    e("s_mov_b32 s44, 0x22222222")
    e("s_mov_b32 s45, 0x22222222")
    e("s_mov_b32 s46, 0x44444444")
    e("s_mov_b32 s47, 0x44444444")
    e("s_mov_b32 s48, 0x88888888")
    e("s_mov_b32 s49, 0x88888888")
    e("s_waitcnt lgkmcnt(0)")
    srd(e, 4, 24, 25, 1024)
    e("s_lshl_b32 s39, s34, 22")
    e("s_add_u32 s26, s26, s39")
    e("s_addc_u32 s27, s27, 0")
    e("s_add_u32 s28, s28, s39")
    e("s_addc_u32 s29, s29, 0")
    srd(e, 8, 26, 27, 0x400000)
    srd(e, 12, 28, 29, 0x400000)
    srd(e, 16, 30, 31, 0x400000)
    srd(e, 20, 32, 33, WS_USED)
    e("buffer_load_dwordx4 v[8:11], v4, s[4:7], 0 offen")
    for it in range(16):
        e("s_mov_b32 s40, 0x%x" % (it * 32768))
        e("buffer_load_dwordx4 v[%d:%d], v3, s[16:19], s40 offen%s" % (B2 + 4 * it, B2 + 4 * it + 3, WMOD))
    kv_loads(e, 8, B0, 0)
    kv_loads(e, 8, B1, 1)
    e("s_waitcnt vmcnt(48)")
    for k in range(4):
        e("v_lshlrev_b32 v%d, 16, v%d" % (12 + 2 * k, 8 + k))
        e("v_and_b32 v%d, 0xffff0000, v%d" % (13 + 2 * k, 8 + k))
    e("v_add_f32 v20, v12, v13")
    for k in range(2, 8):
        e("v_add_f32 v20, v20, v%d" % (12 + k))
    wave_allreduce(e, "v_add_f32", "v20", "v21", "v22")
    e("v_mul_f32 v20, %s, v20" % INV512)
    e("v_mov_b32 v23, 0")
    for k in range(8):
        e("v_sub_f32 v24, v%d, v20" % (12 + k))
        e("v_fma_f32 v23, v24, v24, v23")
    wave_allreduce(e, "v_add_f32", "v23", "v21", "v22")
    e("v_mul_f32 v23, %s, v23" % INV512)
    bf16_round(e, "v24", "v20")
    bf16_round(e, "v25", "v23")
    e("v_add_f32 v25, %s, v25" % EPS)
    bf16_round(e, "v25", "v25")
    e("v_sqrt_f32 v25, v25")
    bf16_round(e, "v25", "v25")
    for k in range(8):
        e("v_sub_f32 v26, v%d, v24" % (12 + k))
        bf16_round(e, "v26", "v26")
        fdiv(e, "v27", "v26", "v25", "v28", "v29")
        bf16_pattern(e, "v%d" % (40 + k), "v27")
    e("v_lshlrev_b32 v26, 11, v5")
    e("v_lshlrev_b32 v27, 5, v1")
    e("v_add_u32 v26, v26, v27")
    e("ds_write_b128 v26, v[40:43] offset:%d" % LDS_LN)
    e("ds_write_b128 v26, v[44:47] offset:%d" % (LDS_LN + 16))
    e("v_lshlrev_b32 v59, 2, v7")
    e("v_lshlrev_b32 v58, 11, v5")
    e("v_add_u32 v59, v59, v58")
    e("s_waitcnt lgkmcnt(0)")
    for it in range(16):
        e("ds_read_b32 v%d, v59 offset:%d" % (16 + it, LDS_LN + 16 * it))
    e("s_waitcnt vmcnt(32) lgkmcnt(0)")
    for it in range(16):
        e("v_lshlrev_b32 v57, 16, v%d" % (16 + it))
        for ee in range(4):
            w = B2 + 4 * it + ee
            if it == 0:
                e("v_dot2_f32_bf16 v%d, v%d, v%d, 0" % (48 + 2 * ee, 16 + it, w))
                e("v_dot2_f32_bf16 v%d, v57, v%d, 0" % (49 + 2 * ee, w))
            else:
                e("v_dot2c_f32_bf16 v%d, v%d, v%d" % (48 + 2 * ee, 16 + it, w))
                e("v_dot2c_f32_bf16 v%d, v57, v%d" % (49 + 2 * ee, w))
    kv_loads(e, 8, B2, 2)
    e("v_lshlrev_b32 v26, 5, v0")
    e("ds_write_b128 v26, v[48:51] offset:%d" % LDS_Q)
    e("ds_write_b128 v26, v[52:55] offset:%d" % (LDS_Q + 16))
    e("s_waitcnt lgkmcnt(0)")
    e("s_barrier")
    e("s_cmp_ge_u32 s36, 2")
    e("s_cbranch_scc1 L_attn_q_done")
    e("v_lshlrev_b32 v59, 2, v0")
    lds_sum32(e, "v57", "v59", LDS_Q, 16)
    e("v_cvt_pk_bf16_f32 v57, v57, 0")
    e("v_lshlrev_b32 v28, 1, v0")
    e("ds_write_b16 v28, v57 offset:%d" % LDS_QB)
    e("s_waitcnt lgkmcnt(0)")
    e.label("L_attn_q_done")
    e("s_barrier")
    e("ds_read_b128 v[32:35], v6 offset:%d" % LDS_QB)
    e("s_waitcnt lgkmcnt(0)")
    if DEBUG:
        e("s_load_dwordx2 s[50:51], s[0:1], 80")
        e("s_waitcnt lgkmcnt(0)")
        srd(e, 52, 50, 51, 256)
        e("s_cmp_lg_u32 s2, 0")
        e("s_cbranch_scc1 L_dbg_skip")
        e("v_cmp_gt_u32 vcc, 16, v0")
        e("s_and_saveexec_b64 s[42:43], vcc")
        e("v_lshlrev_b32 v58, 4, v0")
        e("buffer_store_dwordx4 v[32:35], v58, s[52:55], 0 offen")
        e("s_or_b64 exec, exec, s[42:43]")
        e.label("L_dbg_skip")
    k_step(e, B0, 36, 32, lambda: kv_loads(e, 8, B0, 3))
    k_step(e, B1, 37, 32, lambda: kv_loads(e, 12, B1, 0))
    k_step(e, B2, 38, 32, lambda: kv_loads(e, 12, B2, 1))
    k_step(e, B0, 39, 32, lambda: kv_loads(e, 12, B0, 2))
    e("v_max3_f32 v57, v36, v37, v38")
    e("v_max_f32 v57, v57, v39")
    wave_allreduce(e, "v_max_f32", "v57", "v58", "v59")
    e("v_mov_b32 v56, 0")
    for i in range(4):
        e("v_sub_f32 v58, v%d, v57" % (36 + i))
        e("v_mul_f32 v58, %s, v58" % LOG2E)
        e("v_exp_f32 v58, v58")
        e("v_cvt_pk_bf16_f32 v%d, v58, 0" % (40 + 2 * i))
        e("v_cvt_pk_bf16_f32 v%d, 0, v58" % (41 + 2 * i))
        e("v_add_f32 v56, v56, v%d" % (41 + 2 * i))
    for k in range(8):
        e("v_mov_b32 v%d, 0" % (48 + k))
    v_step(e, B1, 0, 32, lambda: kv_loads(e, 12, B1, 3))
    v_step(e, B2, 1, 32, lambda: None)
    v_step(e, B0, 2, 16, lambda: None)
    v_step(e, B1, 3, 0, lambda: None)
    e("s_lshl_b32 s39, s36, 2")
    e("v_mov_b32 v26, s39")
    e("ds_write_b32 v26, v57 offset:%d" % LDS_M)
    e("s_waitcnt lgkmcnt(0)")
    e("s_barrier")
    e("v_mov_b32 v26, 0")
    e("ds_read_b128 v[16:19], v26 offset:%d" % LDS_M)
    e("ds_read_b128 v[20:23], v26 offset:%d" % (LDS_M + 16))
    e("s_waitcnt lgkmcnt(0)")
    e("v_max3_f32 v24, v16, v17, v18")
    e("v_max3_f32 v24, v24, v19, v20")
    e("v_max3_f32 v24, v24, v21, v22")
    e("v_max_f32 v24, v24, v23")
    e("v_sub_f32 v25, v57, v24")
    e("v_mul_f32 v25, %s, v25" % LOG2E)
    e("v_exp_f32 v25, v25")
    for k in range(8):
        e("v_mul_f32 v%d, v%d, v25" % (48 + k, 48 + k))
    e("v_mul_f32 v56, v56, v25")
    e("v_lshlrev_b32 v26, 5, v0")
    e("ds_write_b128 v26, v[48:51] offset:%d" % LDS_Q)
    e("ds_write_b128 v26, v[52:55] offset:%d" % (LDS_Q + 16))
    e("v_lshlrev_b32 v59, 2, v0")
    e("ds_write_b32 v59, v56 offset:%d" % LDS_L)
    e("s_waitcnt lgkmcnt(0)")
    e("s_barrier")
    e("s_lshl_b32 s39, s34, 3")
    e("s_add_u32 s39, s39, s35")
    e("s_cmp_eq_u32 s36, 2")
    e("s_cbranch_scc1 L_attn_sumL")
    e("s_cmp_ge_u32 s36, 2")
    e("s_cbranch_scc1 L_attn_end")
    lds_sum32(e, "v57", "v59", LDS_Q, 16)
    e("s_lshl_b32 s40, s39, 9")
    e("v_add_u32 v28, s40, v59")
    e("buffer_store_dword v57, v28, s[20:23], 0 offen offset:%d" % WS_O)
    e("s_branch L_attn_end")
    e.label("L_attn_sumL")
    e("v_lshlrev_b32 v26, 5, v1")
    e("ds_read_b128 v[16:19], v26 offset:%d" % LDS_L)
    e("ds_read_b128 v[20:23], v26 offset:%d" % (LDS_L + 16))
    e("s_waitcnt lgkmcnt(0)")
    e("v_add_f32 v25, v16, v17")
    for k in range(2, 8):
        e("v_add_f32 v25, v25, v%d" % (16 + k))
    wave_allreduce(e, "v_add_f32", "v25", "v26", "v27")
    e("v_mov_b32 v26, 0")
    e("s_lshl_b32 s40, s39, 3")
    e("s_add_u32 s40, s40, 0x%x" % WS_ML)
    e("v_mov_b32 v26, s40")
    e("v_cmp_eq_u32 vcc, 0, v1")
    e("s_and_saveexec_b64 s[42:43], vcc")
    e("buffer_store_dwordx2 v[24:25], v26, s[20:23], 0 offen")
    e("s_or_b64 exec, exec, s[42:43]")
    e.label("L_attn_end")
    e("s_endpgm")
    return e.text()


LDS_OH = 0
LDS_R = 1024
LDS_B_TOTAL = 8192


def gen_wo_kernel():
    e = Emitter()
    e("s_cmp_ge_u32 s2, 256")
    e("s_cbranch_scc1 L_wo_end")
    e("s_load_dwordx2 s[24:25], s[0:1], 32")
    e("s_load_dwordx2 s[32:33], s[0:1], 88")
    decode_hc(e)
    e("v_and_b32 v1, 63, v0")
    e("v_lshrrev_b32 v5, 3, v0")
    e("v_lshlrev_b32 v2, 10, v5")
    e("v_and_b32 v6, 7, v0")
    e("v_lshlrev_b32 v6, 4, v6")
    e("v_add_u32 v2, v2, v6")
    e("s_lshl_b32 s39, s34, 17")
    e("s_lshl_b32 s40, s35, 7")
    e("s_add_u32 s39, s39, s40")
    e("v_add_u32 v2, s39, v2")
    e("v_and_b32 v7, 127, v0")
    e("v_lshlrev_b32 v3, 2, v7")
    e("s_lshl_b32 s39, s34, 12")
    e("v_add_u32 v3, s39, v3")
    e("s_lshl_b32 s39, s34, 6")
    e("s_add_u32 s39, s39, 0x%x" % WS_ML)
    e("v_mov_b32 v4, s39")
    e("s_waitcnt lgkmcnt(0)")
    srd(e, 4, 24, 25, 0x400000)
    srd(e, 20, 32, 33, WS_USED)
    for it in range(4):
        e("s_mov_b32 s40, 0x%x" % (it * 32768))
        e("buffer_load_dwordx4 v[%d:%d], v2, s[4:7], s40 offen%s" % (64 + 4 * it, 67 + 4 * it, WMOD))
    for k in range(4):
        e("buffer_load_dwordx4 v[%d:%d], v4, s[20:23], 0 offen offset:%d" % (16 + 4 * k, 19 + 4 * k, 16 * k))
    for c in range(8):
        e("buffer_load_dword v%d, v3, s[20:23], 0 offen offset:%d" % (32 + c, WS_O + 512 * c))
    e("s_waitcnt vmcnt(0)")
    e("v_max3_f32 v40, v16, v18, v20")
    e("v_max3_f32 v40, v40, v22, v24")
    e("v_max3_f32 v40, v40, v26, v28")
    e("v_max_f32 v40, v40, v30")
    e("v_mov_b32 v41, 0")
    e("v_mov_b32 v42, 0")
    for c in range(8):
        e("v_sub_f32 v43, v%d, v40" % (16 + 2 * c))
        e("v_mul_f32 v43, %s, v43" % LOG2E)
        e("v_exp_f32 v43, v43")
        e("v_fma_f32 v41, v43, v%d, v41" % (17 + 2 * c))
        e("v_fma_f32 v42, v43, v%d, v42" % (32 + c))
    fdiv(e, "v43", "v42", "v41", "v44", "v45")
    bf16_pattern(e, "v43", "v43")
    e("v_lshlrev_b32 v44, 2, v7")
    e("ds_write_b32 v44, v43 offset:%d" % LDS_OH)
    e("s_waitcnt lgkmcnt(0)")
    e("s_barrier")
    e("v_lshlrev_b32 v44, 2, v5")
    for it in range(4):
        e("ds_read_b32 v%d, v44 offset:%d" % (46 + it, LDS_OH + 128 * it))
    e("s_waitcnt lgkmcnt(0)")
    for it in range(4):
        e("v_lshlrev_b32 v50, 16, v%d" % (46 + it))
        for ee in range(4):
            w = 64 + 4 * it + ee
            if it == 0:
                e("v_dot2_f32_bf16 v%d, v%d, v%d, 0" % (52 + 2 * ee, 46 + it, w))
                e("v_dot2_f32_bf16 v%d, v50, v%d, 0" % (53 + 2 * ee, w))
            else:
                e("v_dot2c_f32_bf16 v%d, v%d, v%d" % (52 + 2 * ee, 46 + it, w))
                e("v_dot2c_f32_bf16 v%d, v50, v%d" % (53 + 2 * ee, w))
    for k in range(8):
        e("v_add_f32_dpp v%d, v%d, v%d row_ror:8 row_mask:0xf bank_mask:0xf" % (52 + k, 52 + k, 52 + k))
    e("v_lshrrev_b32 v44, 4, v0")
    e("v_lshlrev_b32 v44, 8, v44")
    e("v_lshlrev_b32 v45, 1, v6")
    e("v_add_u32 v44, v44, v45")
    e("ds_write_b128 v44, v[52:55] offset:%d" % LDS_R)
    e("ds_write_b128 v44, v[56:59] offset:%d" % (LDS_R + 16))
    e("s_waitcnt lgkmcnt(0)")
    e("s_barrier")
    e("v_cmp_gt_u32 vcc, 64, v0")
    e("s_and_saveexec_b64 s[42:43], vcc")
    e("s_cbranch_execz L_wo_restore")
    e("v_lshlrev_b32 v44, 2, v0")
    for g in range(16):
        e("ds_read_b32 v%d, v44 offset:%d" % (16 + g, LDS_R + 256 * g))
    e("s_waitcnt lgkmcnt(0)")
    e("v_add_f32 v45, v16, v17")
    for g in range(2, 16):
        e("v_add_f32 v45, v45, v%d" % (16 + g))
    e("s_lshl_b32 s39, s34, 11")
    e("s_lshl_b32 s40, s35, 8")
    e("s_add_u32 s39, s39, s40")
    e("s_add_u32 s39, s39, 0x%x" % WS_P)
    e("v_add_u32 v44, s39, v44")
    e("buffer_store_dword v45, v44, s[20:23], 0 offen")
    e.label("L_wo_restore")
    e("s_or_b64 exec, exec, s[42:43]")
    e.label("L_wo_end")
    e("s_endpgm")
    return e.text()


LDS_C_LN = 0
LDS_C_RED = 2048
LDS_C_R = 4096
LDS_C_TOTAL = 8192
NWG_C = 112


def block_allreduce_add(e, v, t0, t1, lds_off, nwaves):
    wave_allreduce(e, "v_add_f32", v, t0, t1)
    e("v_lshlrev_b32 %s, 2, v5" % t0)
    e("ds_write_b32 %s, %s offset:%d" % (t0, v, lds_off))
    e("s_waitcnt lgkmcnt(0)")
    e("s_barrier")
    e("v_mov_b32 %s, 0" % t0)
    e("ds_read_b128 v[60:63], %s offset:%d" % (t0, lds_off))
    e("s_waitcnt lgkmcnt(0)")
    e("v_add_f32 %s, v60, v61" % v)
    e("v_add_f32 %s, %s, v62" % (v, v))
    e("v_add_f32 %s, %s, v63" % (v, v))


def gen_ffn1_kernel():
    e = Emitter()
    e("s_cmp_ge_u32 s2, %d" % NWG_C)
    e("s_cbranch_scc1 L_ffn1_end")
    e("s_load_dwordx2 s[24:25], s[0:1], 0")
    e("s_load_dwordx4 s[28:31], s[0:1], 48")
    e("s_load_dwordx2 s[32:33], s[0:1], 88")
    e("v_and_b32 v1, 63, v0")
    e("v_lshrrev_b32 v5, 6, v0")
    e("v_lshrrev_b32 v6, 1, v0")
    e("v_mul_u32_u24 v2, 3584, v6")
    e("v_and_b32 v7, 1, v0")
    e("v_lshlrev_b32 v7, 4, v7")
    e("v_add_u32 v2, v2, v7")
    e("s_lshl_b32 s39, s2, 5")
    e("v_add_u32 v2, s39, v2")
    e("v_lshlrev_b32 v3, 3, v0")
    e("v_lshlrev_b32 v4, 2, v0")
    e("s_waitcnt lgkmcnt(0)")
    srd(e, 4, 24, 25, 1024)
    srd(e, 8, 28, 29, 512 * 3584)
    srd(e, 12, 30, 31, 512 * 3584)
    srd(e, 20, 32, 33, WS_USED)
    for it in range(4):
        e("s_mov_b32 s40, 0x%x" % (it * 128 * 3584))
        e("buffer_load_dwordx4 v[%d:%d], v2, s[8:11], s40 offen%s" % (64 + 4 * it, 67 + 4 * it, WMOD))
        e("buffer_load_dwordx4 v[%d:%d], v2, s[12:15], s40 offen%s" % (80 + 4 * it, 83 + 4 * it, WMOD))
    for hh in range(32):
        e("s_mov_b32 s40, 0x%x" % (WS_P + hh * 2048))
        e("buffer_load_dwordx2 v[%d:%d], v3, s[20:23], s40 offen" % (96 + 2 * hh, 97 + 2 * hh))
    e("buffer_load_dword v8, v4, s[4:7], 0 offen")
    e("s_waitcnt vmcnt(0)")
    e("v_add_f32 v10, v96, v98")
    e("v_add_f32 v11, v97, v99")
    for hh in range(2, 32):
        e("v_add_f32 v10, v10, v%d" % (96 + 2 * hh))
        e("v_add_f32 v11, v11, v%d" % (97 + 2 * hh))
    bf16_round(e, "v10", "v10")
    bf16_round(e, "v11", "v11")
    e("v_lshlrev_b32 v12, 16, v8")
    e("v_and_b32 v13, 0xffff0000, v8")
    e("v_add_f32 v10, v12, v10")
    e("v_add_f32 v11, v13, v11")
    bf16_round(e, "v10", "v10")
    bf16_round(e, "v11", "v11")
    e("s_mov_b32 s41, 0x%x" % WS_H)
    e("s_cmp_lg_u32 s2, 0")
    e("s_cbranch_scc1 L_ffn1_noh")
    e("buffer_store_dwordx2 v[10:11], v3, s[20:23], s41 offen")
    e.label("L_ffn1_noh")
    e("v_add_f32 v14, v10, v11")
    block_allreduce_add(e, "v14", "v15", "v16", LDS_C_RED, 4)
    e("v_mul_f32 v14, %s, v14" % INV512)
    e("v_sub_f32 v15, v10, v14")
    e("v_sub_f32 v16, v11, v14")
    e("v_mul_f32 v17, v15, v15")
    e("v_fma_f32 v17, v16, v16, v17")
    block_allreduce_add(e, "v17", "v15", "v16", LDS_C_RED + 16, 4)
    e("v_mul_f32 v17, %s, v17" % INV512)
    bf16_round(e, "v18", "v14")
    bf16_round(e, "v19", "v17")
    e("v_add_f32 v19, %s, v19" % EPS)
    bf16_round(e, "v19", "v19")
    e("v_sqrt_f32 v19, v19")
    bf16_round(e, "v19", "v19")
    for k in range(2):
        e("v_sub_f32 v20, v%d, v18" % (10 + k))
        bf16_round(e, "v20", "v20")
        fdiv(e, "v21", "v20", "v19", "v22", "v23")
        bf16_pattern(e, "v%d" % (24 + k), "v21")
    e("ds_write_b64 v3, v[24:25] offset:%d" % LDS_C_LN)
    e("s_waitcnt lgkmcnt(0)")
    e("s_barrier")
    e("v_lshlrev_b32 v26, 2, v6")
    for it in range(4):
        e("ds_read_b32 v%d, v26 offset:%d" % (28 + it, LDS_C_LN + 512 * it))
    e("s_waitcnt lgkmcnt(0)")
    for it in range(4):
        e("v_lshlrev_b32 v27, 16, v%d" % (28 + it))
        for m in range(2):
            for ee in range(4):
                w = 64 + 16 * m + 4 * it + ee
                a = 32 + 8 * m + 2 * ee
                if it == 0:
                    e("v_dot2_f32_bf16 v%d, v%d, v%d, 0" % (a, 28 + it, w))
                    e("v_dot2_f32_bf16 v%d, v27, v%d, 0" % (a + 1, w))
                else:
                    e("v_dot2c_f32_bf16 v%d, v%d, v%d" % (a, 28 + it, w))
                    e("v_dot2c_f32_bf16 v%d, v27, v%d" % (a + 1, w))
    for k in range(16):
        e("v_add_f32_dpp v%d, v%d, v%d quad_perm:[2,3,0,1] row_mask:0xf bank_mask:0xf" % (32 + k, 32 + k, 32 + k))
    for k in range(16):
        e("v_add_f32_dpp v%d, v%d, v%d row_ror:4 row_mask:0xf bank_mask:0xf" % (32 + k, 32 + k, 32 + k))
    for k in range(16):
        e("v_add_f32_dpp v%d, v%d, v%d row_ror:8 row_mask:0xf bank_mask:0xf" % (32 + k, 32 + k, 32 + k))
    e("v_lshrrev_b32 v26, 4, v0")
    e("v_lshlrev_b32 v26, 7, v26")
    e("v_lshlrev_b32 v27, 2, v7")
    e("v_add_u32 v26, v26, v27")
    for k in range(4):
        e("ds_write_b128 v26, v[%d:%d] offset:%d" % (32 + 4 * k, 35 + 4 * k, LDS_C_R + 16 * k))
    e("s_waitcnt lgkmcnt(0)")
    e("s_barrier")
    e("v_cmp_gt_u32 vcc, 16, v0")
    e("s_and_saveexec_b64 s[42:43], vcc")
    e("s_cbranch_execz L_ffn1_restore")
    e("v_lshrrev_b32 v26, 3, v0")
    e("v_lshlrev_b32 v26, 6, v26")
    e("v_and_b32 v27, 7, v0")
    e("v_lshlrev_b32 v27, 2, v27")
    e("v_add_u32 v26, v26, v27")
    for k in range(16):
        e("ds_read_b32 v%d, v26 offset:%d" % (96 + k, LDS_C_R + 128 * k))
        e("ds_read_b32 v%d, v26 offset:%d" % (112 + k, LDS_C_R + 128 * k + 32))
    e("s_waitcnt lgkmcnt(0)")
    e("v_add_f32 v28, v96, v97")
    e("v_add_f32 v29, v112, v113")
    for k in range(2, 16):
        e("v_add_f32 v28, v28, v%d" % (96 + k))
        e("v_add_f32 v29, v29, v%d" % (112 + k))
    bf16_round(e, "v28", "v28")
    bf16_round(e, "v29", "v29")
    e("v_mul_f32 v30, v28, v28")
    e("v_mul_f32 v30, v30, v28")
    e("s_mov_b32 s40, %s" % KKAPPA)
    e("v_fma_f32 v30, v30, s40, v28")
    e("v_mul_f32 v30, %s, v30" % KBETA)
    e("v_mul_f32 v30, 0xc038aa3b, v30")
    e("v_exp_f32 v30, v30")
    e("v_add_f32 v30, 1.0, v30")
    fdiv(e, "v31", "v28", "v30", "v32", "v33")
    bf16_round(e, "v31", "v31")
    e("v_mul_f32 v31, v31, v29")
    bf16_pattern(e, "v31", "v31")
    e("v_lshlrev_b32 v26, 2, v0")
    e("s_lshl_b32 s39, s2, 6")
    e("s_add_u32 s39, s39, 0x%x" % WS_ACT)
    e("v_add_u32 v26, s39, v26")
    e("buffer_store_dword v31, v26, s[20:23], 0 offen")
    e.label("L_ffn1_restore")
    e("s_or_b64 exec, exec, s[42:43]")
    e.label("L_ffn1_end")
    e("s_endpgm")
    return e.text()


LDS_D_R = 0
LDS_D_TOTAL = 4096
NWG_D = 64


def gen_ffn2_kernel():
    e = Emitter()
    e("s_cmp_ge_u32 s2, %d" % NWG_D)
    e("s_cbranch_scc1 L_ffn2_end")
    e("s_load_dwordx2 s[24:25], s[0:1], 64")
    e("s_load_dwordx2 s[26:27], s[0:1], 72")
    e("s_load_dwordx2 s[32:33], s[0:1], 88")
    e("v_and_b32 v1, 63, v0")
    e("v_lshlrev_b32 v2, 10, v0")
    e("s_lshl_b32 s39, s2, 4")
    e("v_add_u32 v2, s39, v2")
    e("v_lshlrev_b32 v3, 2, v0")
    e("s_waitcnt lgkmcnt(0)")
    srd(e, 4, 24, 25, 1792 * 1024)
    srd(e, 8, 26, 27, 1024)
    srd(e, 20, 32, 33, WS_USED)
    for it in range(7):
        e("s_mov_b32 s40, 0x%x" % (it * 262144))
        e("buffer_load_dwordx4 v[%d:%d], v2, s[4:7], s40 offen%s" % (64 + 4 * it, 67 + 4 * it, WMOD))
    for it in range(7):
        e("s_mov_b32 s40, 0x%x" % (WS_ACT + it * 1024))
        e("buffer_load_dword v%d, v3, s[20:23], s40 offen" % (8 + it))
    e("v_and_b32 v4, 7, v0")
    e("v_lshlrev_b32 v4, 2, v4")
    e("s_lshl_b32 s39, s2, 5")
    e("s_add_u32 s39, s39, 0x%x" % WS_H)
    e("v_add_u32 v4, s39, v4")
    e("buffer_load_dword v15, v4, s[20:23], 0 offen")
    e("s_waitcnt vmcnt(0)")
    for it in range(7):
        e("v_lshlrev_b32 v16, 16, v%d" % (8 + it))
        for ee in range(4):
            w = 64 + 4 * it + ee
            if it == 0:
                e("v_dot2_f32_bf16 v%d, v%d, v%d, 0" % (32 + 2 * ee, 8 + it, w))
                e("v_dot2_f32_bf16 v%d, v16, v%d, 0" % (33 + 2 * ee, w))
            else:
                e("v_dot2c_f32_bf16 v%d, v%d, v%d" % (32 + 2 * ee, 8 + it, w))
                e("v_dot2c_f32_bf16 v%d, v16, v%d" % (33 + 2 * ee, w))
    for r in (1, 2, 4, 8):
        for k in range(8):
            e("v_add_f32_dpp v%d, v%d, v%d row_ror:%d row_mask:0xf bank_mask:0xf" % (32 + k, 32 + k, 32 + k, r))
    e("v_lshrrev_b32 v26, 4, v0")
    e("v_lshlrev_b32 v26, 5, v26")
    e("ds_write_b128 v26, v[32:35] offset:%d" % LDS_D_R)
    e("ds_write_b128 v26, v[36:39] offset:%d" % (LDS_D_R + 16))
    e("s_waitcnt lgkmcnt(0)")
    e("s_barrier")
    e("v_cmp_gt_u32 vcc, 8, v0")
    e("s_and_saveexec_b64 s[42:43], vcc")
    e("s_cbranch_execz L_ffn2_restore")
    e("v_lshlrev_b32 v26, 2, v0")
    for g in range(16):
        e("ds_read_b32 v%d, v26 offset:%d" % (40 + g, LDS_D_R + 32 * g))
    e("s_waitcnt lgkmcnt(0)")
    e("v_add_f32 v27, v40, v41")
    for g in range(2, 16):
        e("v_add_f32 v27, v27, v%d" % (40 + g))
    bf16_round(e, "v27", "v27")
    e("v_add_f32 v27, v15, v27")
    e("v_cvt_pk_bf16_f32 v27, v27, 0")
    e("v_lshlrev_b32 v28, 1, v0")
    e("s_lshl_b32 s39, s2, 4")
    e("v_add_u32 v28, s39, v28")
    e("buffer_store_short v27, v28, s[8:11], 0 offen")
    e.label("L_ffn2_restore")
    e("s_or_b64 exec, exec, s[42:43]")
    e.label("L_ffn2_end")
    e("s_endpgm")
    return e.text()


HEADER = """; Kernarg layout for this problem (96 bytes, ptrs only, base s[0:1]):
"""


def kd(name, vgpr, sgpr=102):
    acc = (vgpr + 3) // 4 * 4
    return """.amdhsa_kernel %s
  .amdhsa_next_free_vgpr %d
  .amdhsa_next_free_sgpr %d
  .amdhsa_accum_offset %d
  .amdhsa_group_segment_fixed_size 0
  .amdhsa_kernarg_size 96
  .amdhsa_user_sgpr_count 2
  .amdhsa_user_sgpr_kernarg_segment_ptr 1
  .amdhsa_system_sgpr_workgroup_id_x 1
.end_amdhsa_kernel
""" % (name, vgpr, sgpr, acc)


def main(out):
    s = HEADER
    s += "; @launch kernel=attn_kernel grid=(256,1,1) block=(512,1,1) lds=%d\n" % LDS_A_TOTAL
    s += "; @launch kernel=wo_kernel grid=(256,1,1) block=(256,1,1) lds=%d\n" % LDS_B_TOTAL
    s += "; @launch kernel=ffn1_kernel grid=(%d,1,1) block=(256,1,1) lds=%d\n" % (NWG_C, LDS_C_TOTAL)
    s += "; @launch kernel=ffn2_kernel grid=(%d,1,1) block=(256,1,1) lds=%d\n" % (NWG_D, LDS_D_TOTAL)
    s += '.amdgcn_target "amdgcn-amd-amdhsa--gfx950"\n.text\n'
    for name, body in (("attn_kernel", gen_attn_kernel()), ("wo_kernel", gen_wo_kernel()),
                       ("ffn1_kernel", gen_ffn1_kernel()), ("ffn2_kernel", gen_ffn2_kernel())):
        s += ".globl %s\n.p2align 8\n.type %s,@function\n%s:\n" % (name, name, name)
        s += body
    s += '.section .rodata,"a"\n'
    for name, v in (("attn_kernel", 256), ("wo_kernel", 80), ("ffn1_kernel", 160), ("ffn2_kernel", 96)):
        s += ".p2align 6\n" + kd(name, v, 64)
    open(out, "w").write(s)


if __name__ == "__main__":
    main(sys.argv[1] if len(sys.argv) > 1 else "sequential_preLN__mha_block_cached__geglu_ffn__decode.s")
```

```python
import sys, os
sys.path.insert(0, os.path.dirname(__file__))
from asmgen import Emitter, wave_allreduce, bf16_round, bf16_pattern, fdiv

DEBUG = bool(os.environ.get("GEN_DEBUG"))
KVMOD = os.environ.get("GEN_KVMOD", "")
WMOD = os.environ.get("GEN_WMOD", "")
PREF = os.environ.get("GEN_PREF", "1") == "1"
LATEK = int(os.environ.get("GEN_LATEK", "0"))
LOG2E = "0x3fb8aa3b"
SCALE = "0x3db504f3"
EPS = "0x3727c5ac"
INV512 = "0x3b000000"
KKAPPA = "0x3d372713"
KBETA = "0x3f4c422a"

WS_O = 0x0
WS_ML = 0x20000
WS_P = 0x40000
WS_H = 0x50000
WS_ACT = 0x51000
WS_USED = 0x60000


def srd(e, d, lo, hi, nbytes):
    e("s_mov_b32 s%d, s%d" % (d, lo))
    e("s_mov_b32 s%d, s%d" % (d + 1, hi))
    e("s_mov_b32 s%d, 0x%x" % (d + 2, nbytes))
    e("s_mov_b32 s%d, 0x00020000" % (d + 3))


STAMP = bool(os.environ.get("GEN_STAMP"))


def stamp(e, idx):
    if STAMP:
        e("s_memrealtime s[%d:%d]" % (60 + 2 * idx, 61 + 2 * idx))


def stamp_dump(e, n, tag):
    if STAMP:
        e("s_waitcnt lgkmcnt(0)")
        e("s_load_dwordx2 s[50:51], s[0:1], 80")
        e("s_waitcnt lgkmcnt(0)")
        srd(e, 52, 50, 51, 256)
        e("s_cmp_lg_u32 s2, 0")
        e("s_cbranch_scc1 L_stamp_skip_%s" % tag)
        e("v_cmp_eq_u32 vcc, 0, v0")
        e("s_and_saveexec_b64 s[42:43], vcc")
        for i in range(n):
            e("v_mov_b32 v60, s%d" % (60 + 2 * i))
            e("v_mov_b32 v61, 0")
            e("buffer_store_dword v60, v61, s[52:55], 0 offen offset:%d" % (4 * i))
        e("s_or_b64 exec, exec, s[42:43]")
        e.label("L_stamp_skip_%s" % tag)


STAMPA = bool(os.environ.get("GEN_STAMPA"))


def stampA(e, idx):
    if STAMPA:
        e("s_memrealtime s[%d:%d]" % (80 + 2 * idx, 81 + 2 * idx))


def stampA_dump(e):
    if STAMPA:
        e("s_waitcnt lgkmcnt(0)")
        e("s_cmp_lg_u32 s36, 0")
        e("s_cbranch_scc1 L_stampA_skip")
        e("s_mov_b32 s22, 0x200000")
        e("s_lshl_b32 s39, s2, 5")
        e("s_add_u32 s39, s39, 0x100000")
        e("v_cmp_eq_u32 vcc, 0, v0")
        e("s_and_saveexec_b64 s[42:43], vcc")
        for i in range(6):
            e("v_mov_b32 v60, s%d" % (80 + 2 * i))
            e("v_mov_b32 v61, s39")
            e("buffer_store_dword v60, v61, s[20:23], 0 offen offset:%d" % (4 * i))
        e("s_or_b64 exec, exec, s[42:43]")
        e.label("L_stampA_skip")


def decode_hc(e):
    e("s_and_b32 s37, s2, 7")
    e("s_lshr_b32 s38, s2, 3")
    e("s_and_b32 s38, s38, 3")
    e("s_lshl_b32 s34, s37, 2")
    e("s_add_u32 s34, s34, s38")
    e("s_lshr_b32 s35, s2, 5")


def lds_sum32(e, dst, vaddr, base, r0):
    for half in range(2):
        for g in range(16):
            e("ds_read_b32 v%d, %s offset:%d" % (r0 + g, vaddr, base + 512 * (half * 16 + g)))
        e("s_waitcnt lgkmcnt(0)")
        for g in range(16):
            if half == 0 and g == 0:
                e("v_mov_b32 %s, v%d" % (dst, r0))
            else:
                e("v_add_f32 %s, %s, v%d" % (dst, dst, r0 + g))


LDS_LN = 0
LDS_Q = 16384
LDS_QB = 32768
LDS_M = 33024
LDS_L = 33280
LDS_A_TOTAL = 36864

B0, B1, B2 = 64, 128, 192


def kv_loads(e, srd_base, buf, tile):
    for jg in range(4):
        e("s_mov_b32 s40, 0x%x" % (tile * 131072 + jg * 4096))
        for j4 in range(4):
            j = jg * 4 + j4
            e("buffer_load_dwordx4 v[%d:%d], v2, s[%d:%d], s40 offen offset:%d%s"
              % (buf + 4 * j, buf + 4 * j + 3, srd_base, srd_base + 3, j4 * 1024, KVMOD))


def k_step(e, buf, sc, vm_wait, next_issue):
    e("s_waitcnt vmcnt(%d)" % vm_wait)
    for ee in range(4):
        for j in range(16):
            if ee == 0:
                e("v_dot2_f32_bf16 v%d, v%d, v32, 0" % (16 + j, buf + 4 * j))
            else:
                e("v_dot2c_f32_bf16 v%d, v%d, v%d" % (16 + j, buf + 4 * j + ee, 32 + ee))
    next_issue()
    for j in range(8):
        e("v_add_f32_dpp v%d, v%d, v%d row_ror:8 row_mask:0xf bank_mask:0x3" % (16 + j, 16 + j, 16 + j))
        e("v_add_f32_dpp v%d, v%d, v%d row_ror:8 row_mask:0xf bank_mask:0xc" % (16 + j, 24 + j, 24 + j))
    for j in range(4):
        e("v_add_f32_dpp v%d, v%d, v%d row_half_mirror row_mask:0xf bank_mask:0x5" % (16 + j, 16 + j, 16 + j))
        e("v_add_f32_dpp v%d, v%d, v%d row_half_mirror row_mask:0xf bank_mask:0xa" % (16 + j, 20 + j, 20 + j))
    for j in range(4):
        e("v_add_f32_dpp v%d, v%d, v%d quad_perm:[1,0,3,2] row_mask:0xf bank_mask:0xf" % (16 + j, 16 + j, 16 + j))
    for j in range(4):
        e("v_add_f32_dpp v%d, v%d, v%d quad_perm:[2,3,0,1] row_mask:0xf bank_mask:0xf" % (16 + j, 16 + j, 16 + j))
    e("v_cndmask_b32 v%d, v16, v17, s[44:45]" % sc)
    e("v_cndmask_b32 v%d, v%d, v18, s[46:47]" % (sc, sc))
    e("v_cndmask_b32 v%d, v%d, v19, s[48:49]" % (sc, sc))
    bf16_round(e, "v%d" % sc, "v%d" % sc)
    e("v_mul_f32 v%d, %s, v%d" % (sc, SCALE, sc))
    bf16_round(e, "v%d" % sc, "v%d" % sc)


def v_step(e, buf, tile, vm_wait, next_issue):
    e("s_waitcnt vmcnt(%d)" % vm_wait)
    plo, phi = 40 + 2 * tile, 41 + 2 * tile
    for j in range(16):
        for ee in range(4):
            e("v_dot2c_f32_bf16_dpp v%d, v%d, v%d row_newbcast:%d row_mask:0xf bank_mask:0xf"
              % (48 + 2 * ee, plo, buf + 4 * j + ee, j))
            e("v_dot2c_f32_bf16_dpp v%d, v%d, v%d row_newbcast:%d row_mask:0xf bank_mask:0xf"
              % (49 + 2 * ee, phi, buf + 4 * j + ee, j))
    next_issue()


def prefetch_tail_weights(e):
    e("s_and_b32 s37, s2, 7")
    e("s_lshr_b32 s38, s2, 3")
    e("s_lshl_b32 s39, s37, 19")
    e("s_lshl_b32 s40, s38, 14")
    e("s_add_u32 s39, s39, s40")
    e("v_lshlrev_b32 v60, 6, v0")
    e("v_add_u32 v60, s39, v60")
    e("s_cmp_ge_u32 s36, 4")
    e("s_cbranch_scc1 L_pref_gu")
    e("buffer_load_dword v61, v60, s[52:55], 0 offen")
    e("s_branch L_pref_done")
    e.label("L_pref_gu")
    e("v_subrev_u32 v60, 256, v0")
    e("v_lshrrev_b32 v61, 4, v60")
    e("s_lshl_b32 s39, s38, 4")
    e("v_add_u32 v61, s39, v61")
    e("v_mul_u32_u24 v61, 3584, v61")
    e("v_and_b32 v62, 7, v60")
    e("v_lshlrev_b32 v62, 6, v62")
    e("v_add_u32 v61, v61, v62")
    e("s_mul_i32 s39, s37, 448")
    e("s_and_b32 s39, s39, 0xffffff80")
    e("v_add_u32 v61, s39, v61")
    e("buffer_load_dword v62, v61, s[56:59], 0 offen")
    e("buffer_load_dword v63, v61, s[60:63], 0 offen")
    e("s_mul_i32 s39, s38, 56")
    e("v_add_u32 v61, s39, v60")
    e("v_lshlrev_b32 v61, 10, v61")
    e("s_lshl_b32 s39, s37, 7")
    e("v_add_u32 v61, s39, v61")
    e("v_cmp_gt_u32 vcc, 56, v60")
    e("s_and_saveexec_b64 s[42:43], vcc")
    e("s_cbranch_execz L_pref_dskip")
    e("buffer_load_dword v62, v61, s[64:67], 0 offen")
    e("buffer_load_dword v63, v61, s[64:67], 0 offen offset:64")
    e.label("L_pref_dskip")
    e("s_or_b64 exec, exec, s[42:43]")
    e.label("L_pref_done")
    return 0


def gen_attn_kernel():
    e = Emitter()
    e("s_cmp_ge_u32 s2, 256")
    e("s_cbranch_scc1 L_attn_end")
    stampA(e, 0)
    e("s_load_dwordx8 s[24:31], s[0:1], 0")
    e("s_load_dwordx2 s[32:33], s[0:1], 88")
    e("s_load_dwordx2 s[68:69], s[0:1], 32")
    e("s_load_dwordx4 s[72:75], s[0:1], 48")
    e("s_load_dwordx2 s[70:71], s[0:1], 64")
    decode_hc(e)
    e("v_and_b32 v1, 63, v0")
    e("v_lshrrev_b32 v5, 6, v0")
    e("v_readfirstlane_b32 s36, v5")
    e("s_lshl_b32 s39, s35, 19")
    e("v_lshlrev_b32 v6, 14, v5")
    e("v_lshlrev_b32 v2, 4, v1")
    e("v_add_u32 v2, v2, v6")
    e("v_add_u32 v2, s39, v2")
    e("v_lshrrev_b32 v7, 4, v1")
    e("v_lshlrev_b32 v8, 6, v5")
    e("v_add_u32 v7, v7, v8")
    e("v_lshlrev_b32 v3, 13, v7")
    e("v_and_b32 v6, 15, v1")
    e("v_lshlrev_b32 v6, 4, v6")
    e("v_add_u32 v3, v3, v6")
    e("s_lshl_b32 s39, s34, 8")
    e("v_add_u32 v3, s39, v3")
    e("v_lshlrev_b32 v4, 4, v1")
    e("s_mov_b32 s44, 0x22222222")
    e("s_mov_b32 s45, 0x22222222")
    e("s_mov_b32 s46, 0x44444444")
    e("s_mov_b32 s47, 0x44444444")
    e("s_mov_b32 s48, 0x88888888")
    e("s_mov_b32 s49, 0x88888888")
    e("s_waitcnt lgkmcnt(0)")
    srd(e, 4, 24, 25, 1024)
    e("s_lshl_b32 s39, s34, 22")
    e("s_add_u32 s26, s26, s39")
    e("s_addc_u32 s27, s27, 0")
    e("s_add_u32 s28, s28, s39")
    e("s_addc_u32 s29, s29, 0")
    srd(e, 8, 26, 27, 0x400000)
    srd(e, 12, 28, 29, 0x400000)
    srd(e, 16, 30, 31, 0x400000)
    srd(e, 20, 32, 33, WS_USED)
    srd(e, 52, 68, 69, 0x400000)
    srd(e, 56, 72, 73, 512 * 3584)
    srd(e, 60, 74, 75, 512 * 3584)
    srd(e, 64, 70, 71, 1792 * 1024)
    e("buffer_load_dwordx4 v[8:11], v4, s[4:7], 0 offen")
    for it in range(16):
        e("s_mov_b32 s40, 0x%x" % (it * 32768))
        e("buffer_load_dwordx4 v[%d:%d], v3, s[16:19], s40 offen%s" % (B2 + 4 * it, B2 + 4 * it + 3, WMOD))
    if LATEK < 2:
        kv_loads(e, 8, B0, 0)
    if LATEK < 1:
        kv_loads(e, 8, B1, 1)
    e("s_waitcnt vmcnt(%d)" % (48 - 16 * min(LATEK, 2)))
    for k in range(4):
        e("v_lshlrev_b32 v%d, 16, v%d" % (12 + 2 * k, 8 + k))
        e("v_and_b32 v%d, 0xffff0000, v%d" % (13 + 2 * k, 8 + k))
    e("v_add_f32 v20, v12, v13")
    for k in range(2, 8):
        e("v_add_f32 v20, v20, v%d" % (12 + k))
    wave_allreduce(e, "v_add_f32", "v20", "v21", "v22")
    e("v_mul_f32 v20, %s, v20" % INV512)
    e("v_mov_b32 v23, 0")
    for k in range(8):
        e("v_sub_f32 v24, v%d, v20" % (12 + k))
        e("v_fma_f32 v23, v24, v24, v23")
    wave_allreduce(e, "v_add_f32", "v23", "v21", "v22")
    e("v_mul_f32 v23, %s, v23" % INV512)
    bf16_round(e, "v24", "v20")
    bf16_round(e, "v25", "v23")
    e("v_add_f32 v25, %s, v25" % EPS)
    bf16_round(e, "v25", "v25")
    e("v_sqrt_f32 v25, v25")
    bf16_round(e, "v25", "v25")
    for k in range(8):
        e("v_sub_f32 v26, v%d, v24" % (12 + k))
        bf16_round(e, "v26", "v26")
        fdiv(e, "v27", "v26", "v25", "v28", "v29")
        bf16_pattern(e, "v%d" % (40 + k), "v27")
    e("v_lshlrev_b32 v26, 11, v5")
    e("v_lshlrev_b32 v27, 5, v1")
    e("v_add_u32 v26, v26, v27")
    e("ds_write_b128 v26, v[40:43] offset:%d" % LDS_LN)
    e("ds_write_b128 v26, v[44:47] offset:%d" % (LDS_LN + 16))
    e("v_lshlrev_b32 v59, 2, v7")
    e("v_lshlrev_b32 v58, 11, v5")
    e("v_add_u32 v59, v59, v58")
    e("s_waitcnt lgkmcnt(0)")
    for it in range(16):
        e("ds_read_b32 v%d, v59 offset:%d" % (16 + it, LDS_LN + 16 * it))
    e("s_waitcnt vmcnt(%d) lgkmcnt(0)" % (32 - 16 * min(LATEK, 2)))
    stampA(e, 1)
    if LATEK == 2:
        kv_loads(e, 8, B0, 0)
    if LATEK in (1, 2):
        kv_loads(e, 8, B1, 1)
    for it in range(16):
        e("v_lshlrev_b32 v57, 16, v%d" % (16 + it))
        for ee in range(4):
            w = B2 + 4 * it + ee
            if it == 0:
                e("v_dot2_f32_bf16 v%d, v%d, v%d, 0" % (48 + 2 * ee, 16 + it, w))
                e("v_dot2_f32_bf16 v%d, v57, v%d, 0" % (49 + 2 * ee, w))
            else:
                e("v_dot2c_f32_bf16 v%d, v%d, v%d" % (48 + 2 * ee, 16 + it, w))
                e("v_dot2c_f32_bf16 v%d, v57, v%d" % (49 + 2 * ee, w))
    if LATEK == 3:
        kv_loads(e, 8, B0, 0)
    else:
        kv_loads(e, 8, B2, 2)
    e("v_lshlrev_b32 v26, 5, v0")
    e("ds_write_b128 v26, v[48:51] offset:%d" % LDS_Q)
    e("ds_write_b128 v26, v[52:55] offset:%d" % (LDS_Q + 16))
    e("s_waitcnt lgkmcnt(0)")
    e("s_barrier")
    e("s_cmp_ge_u32 s36, 2")
    e("s_cbranch_scc1 L_attn_q_done")
    e("v_lshlrev_b32 v59, 2, v0")
    lds_sum32(e, "v57", "v59", LDS_Q, 16)
    e("v_cvt_pk_bf16_f32 v57, v57, 0")
    e("v_lshlrev_b32 v28, 1, v0")
    e("ds_write_b16 v28, v57 offset:%d" % LDS_QB)
    e("s_waitcnt lgkmcnt(0)")
    e.label("L_attn_q_done")
    e("s_barrier")
    e("ds_read_b128 v[32:35], v6 offset:%d" % LDS_QB)
    e("s_waitcnt lgkmcnt(0)")
    if DEBUG:
        e("s_load_dwordx2 s[50:51], s[0:1], 80")
        e("s_waitcnt lgkmcnt(0)")
        srd(e, 52, 50, 51, 256)
        e("s_cmp_lg_u32 s2, 0")
        e("s_cbranch_scc1 L_dbg_skip")
        e("v_cmp_gt_u32 vcc, 16, v0")
        e("s_and_saveexec_b64 s[42:43], vcc")
        e("v_lshlrev_b32 v58, 4, v0")
        e("buffer_store_dwordx4 v[32:35], v58, s[52:55], 0 offen")
        e("s_or_b64 exec, exec, s[42:43]")
        e.label("L_dbg_skip")
    if LATEK == 3:
        kv_loads(e, 8, B1, 1)
        kv_loads(e, 8, B2, 2)
    stampA(e, 2)
    k_step(e, B0, 36, 32, lambda: kv_loads(e, 8, B0, 3))
    k_step(e, B1, 37, 32, lambda: kv_loads(e, 12, B1, 0))
    k_step(e, B2, 38, 32, lambda: kv_loads(e, 12, B2, 1))
    k_step(e, B0, 39, 32, lambda: kv_loads(e, 12, B0, 2))
    e("v_max3_f32 v57, v36, v37, v38")
    e("v_max_f32 v57, v57, v39")
    wave_allreduce(e, "v_max_f32", "v57", "v58", "v59")
    e("v_mov_b32 v56, 0")
    for i in range(4):
        e("v_sub_f32 v58, v%d, v57" % (36 + i))
        e("v_mul_f32 v58, %s, v58" % LOG2E)
        e("v_exp_f32 v58, v58")
        e("v_cvt_pk_bf16_f32 v%d, v58, 0" % (40 + 2 * i))
        e("v_cvt_pk_bf16_f32 v%d, 0, v58" % (41 + 2 * i))
        e("v_add_f32 v56, v56, v%d" % (41 + 2 * i))
    for k in range(8):
        e("v_mov_b32 v%d, 0" % (48 + k))
    stampA(e, 3)
    v_step(e, B1, 0, 32, lambda: kv_loads(e, 12, B1, 3))
    v_step(e, B2, 1, 32, lambda: None)
    v_step(e, B0, 2, 16, lambda: None)
    npre = 0
    if PREF:
        npre = prefetch_tail_weights(e)
    v_step(e, B1, 3, npre, lambda: None)
    stampA(e, 4)
    e("s_lshl_b32 s39, s36, 2")
    e("v_mov_b32 v26, s39")
    e("ds_write_b32 v26, v57 offset:%d" % LDS_M)
    e("s_waitcnt lgkmcnt(0)")
    e("s_barrier")
    e("v_mov_b32 v26, 0")
    e("ds_read_b128 v[16:19], v26 offset:%d" % LDS_M)
    e("ds_read_b128 v[20:23], v26 offset:%d" % (LDS_M + 16))
    e("s_waitcnt lgkmcnt(0)")
    e("v_max3_f32 v24, v16, v17, v18")
    e("v_max3_f32 v24, v24, v19, v20")
    e("v_max3_f32 v24, v24, v21, v22")
    e("v_max_f32 v24, v24, v23")
    e("v_sub_f32 v25, v57, v24")
    e("v_mul_f32 v25, %s, v25" % LOG2E)
    e("v_exp_f32 v25, v25")
    for k in range(8):
        e("v_mul_f32 v%d, v%d, v25" % (48 + k, 48 + k))
    e("v_mul_f32 v56, v56, v25")
    e("v_lshlrev_b32 v26, 5, v0")
    e("ds_write_b128 v26, v[48:51] offset:%d" % LDS_Q)
    e("ds_write_b128 v26, v[52:55] offset:%d" % (LDS_Q + 16))
    e("v_lshlrev_b32 v59, 2, v0")
    e("ds_write_b32 v59, v56 offset:%d" % LDS_L)
    e("s_waitcnt lgkmcnt(0)")
    e("s_barrier")
    e("s_lshl_b32 s39, s34, 3")
    e("s_add_u32 s39, s39, s35")
    e("s_cmp_eq_u32 s36, 2")
    e("s_cbranch_scc1 L_attn_sumL")
    e("s_cmp_ge_u32 s36, 2")
    e("s_cbranch_scc1 L_attn_fin")
    lds_sum32(e, "v57", "v59", LDS_Q, 16)
    e("s_lshl_b32 s40, s39, 9")
    e("v_add_u32 v28, s40, v59")
    e("buffer_store_dword v57, v28, s[20:23], 0 offen offset:%d" % WS_O)
    e("s_branch L_attn_fin")
    e.label("L_attn_sumL")
    e("v_lshlrev_b32 v26, 5, v1")
    e("ds_read_b128 v[16:19], v26 offset:%d" % LDS_L)
    e("ds_read_b128 v[20:23], v26 offset:%d" % (LDS_L + 16))
    e("s_waitcnt lgkmcnt(0)")
    e("v_add_f32 v25, v16, v17")
    for k in range(2, 8):
        e("v_add_f32 v25, v25, v%d" % (16 + k))
    wave_allreduce(e, "v_add_f32", "v25", "v26", "v27")
    e("v_mov_b32 v26, 0")
    e("s_lshl_b32 s40, s39, 3")
    e("s_add_u32 s40, s40, 0x%x" % WS_ML)
    e("v_mov_b32 v26, s40")
    e("v_cmp_eq_u32 vcc, 0, v1")
    e("s_and_saveexec_b64 s[42:43], vcc")
    e("buffer_store_dwordx2 v[24:25], v26, s[20:23], 0 offen")
    e("s_or_b64 exec, exec, s[42:43]")
    e.label("L_attn_fin")
    stampA(e, 5)
    stampA_dump(e)
    e.label("L_attn_end")
    e("s_endpgm")
    return e.text()


LDS_OH = 0
LDS_R = 1024
LDS_B_TOTAL = 8192


def gen_wo_kernel():
    e = Emitter()
    e("s_cmp_ge_u32 s2, 256")
    e("s_cbranch_scc1 L_wo_end")
    e("s_load_dwordx2 s[24:25], s[0:1], 32")
    e("s_load_dwordx2 s[32:33], s[0:1], 88")
    decode_hc(e)
    e("v_and_b32 v1, 63, v0")
    e("v_lshrrev_b32 v5, 3, v0")
    e("v_lshlrev_b32 v2, 10, v5")
    e("v_and_b32 v6, 7, v0")
    e("v_lshlrev_b32 v6, 4, v6")
    e("v_add_u32 v2, v2, v6")
    e("s_lshl_b32 s39, s34, 17")
    e("s_lshl_b32 s40, s35, 7")
    e("s_add_u32 s39, s39, s40")
    e("v_add_u32 v2, s39, v2")
    e("v_and_b32 v7, 127, v0")
    e("v_lshlrev_b32 v3, 2, v7")
    e("s_lshl_b32 s39, s34, 12")
    e("v_add_u32 v3, s39, v3")
    e("s_lshl_b32 s39, s34, 6")
    e("s_add_u32 s39, s39, 0x%x" % WS_ML)
    e("v_mov_b32 v4, s39")
    e("s_waitcnt lgkmcnt(0)")
    srd(e, 4, 24, 25, 0x400000)
    srd(e, 20, 32, 33, WS_USED)
    for it in range(4):
        e("s_mov_b32 s40, 0x%x" % (it * 32768))
        e("buffer_load_dwordx4 v[%d:%d], v2, s[4:7], s40 offen%s" % (64 + 4 * it, 67 + 4 * it, WMOD))
    for k in range(4):
        e("buffer_load_dwordx4 v[%d:%d], v4, s[20:23], 0 offen offset:%d" % (16 + 4 * k, 19 + 4 * k, 16 * k))
    for c in range(8):
        e("buffer_load_dword v%d, v3, s[20:23], 0 offen offset:%d" % (32 + c, WS_O + 512 * c))
    e("s_waitcnt vmcnt(0)")
    e("v_max3_f32 v40, v16, v18, v20")
    e("v_max3_f32 v40, v40, v22, v24")
    e("v_max3_f32 v40, v40, v26, v28")
    e("v_max_f32 v40, v40, v30")
    e("v_mov_b32 v41, 0")
    e("v_mov_b32 v42, 0")
    for c in range(8):
        e("v_sub_f32 v43, v%d, v40" % (16 + 2 * c))
        e("v_mul_f32 v43, %s, v43" % LOG2E)
        e("v_exp_f32 v43, v43")
        e("v_fma_f32 v41, v43, v%d, v41" % (17 + 2 * c))
        e("v_fma_f32 v42, v43, v%d, v42" % (32 + c))
    fdiv(e, "v43", "v42", "v41", "v44", "v45")
    bf16_pattern(e, "v43", "v43")
    e("v_lshlrev_b32 v44, 2, v7")
    e("ds_write_b32 v44, v43 offset:%d" % LDS_OH)
    e("s_waitcnt lgkmcnt(0)")
    e("s_barrier")
    e("v_lshlrev_b32 v44, 2, v5")
    for it in range(4):
        e("ds_read_b32 v%d, v44 offset:%d" % (46 + it, LDS_OH + 128 * it))
    e("s_waitcnt lgkmcnt(0)")
    for it in range(4):
        e("v_lshlrev_b32 v50, 16, v%d" % (46 + it))
        for ee in range(4):
            w = 64 + 4 * it + ee
            if it == 0:
                e("v_dot2_f32_bf16 v%d, v%d, v%d, 0" % (52 + 2 * ee, 46 + it, w))
                e("v_dot2_f32_bf16 v%d, v50, v%d, 0" % (53 + 2 * ee, w))
            else:
                e("v_dot2c_f32_bf16 v%d, v%d, v%d" % (52 + 2 * ee, 46 + it, w))
                e("v_dot2c_f32_bf16 v%d, v50, v%d" % (53 + 2 * ee, w))
    for k in range(8):
        e("v_add_f32_dpp v%d, v%d, v%d row_ror:8 row_mask:0xf bank_mask:0xf" % (52 + k, 52 + k, 52 + k))
    e("v_lshrrev_b32 v44, 4, v0")
    e("v_lshlrev_b32 v44, 8, v44")
    e("v_lshlrev_b32 v45, 1, v6")
    e("v_add_u32 v44, v44, v45")
    e("ds_write_b128 v44, v[52:55] offset:%d" % LDS_R)
    e("ds_write_b128 v44, v[56:59] offset:%d" % (LDS_R + 16))
    e("s_waitcnt lgkmcnt(0)")
    e("s_barrier")
    e("v_cmp_gt_u32 vcc, 64, v0")
    e("s_and_saveexec_b64 s[42:43], vcc")
    e("s_cbranch_execz L_wo_restore")
    e("v_lshlrev_b32 v44, 2, v0")
    for g in range(16):
        e("ds_read_b32 v%d, v44 offset:%d" % (16 + g, LDS_R + 256 * g))
    e("s_waitcnt lgkmcnt(0)")
    e("v_add_f32 v45, v16, v17")
    for g in range(2, 16):
        e("v_add_f32 v45, v45, v%d" % (16 + g))
    e("s_lshl_b32 s39, s34, 11")
    e("s_lshl_b32 s40, s35, 8")
    e("s_add_u32 s39, s39, s40")
    e("s_add_u32 s39, s39, 0x%x" % WS_P)
    e("v_add_u32 v44, s39, v44")
    e("buffer_store_dword v45, v44, s[20:23], 0 offen")
    e.label("L_wo_restore")
    e("s_or_b64 exec, exec, s[42:43]")
    e.label("L_wo_end")
    e("s_endpgm")
    return e.text()


LDS_C_LN = 0
LDS_C_RED = 2048
LDS_C_R = 4096
LDS_C_TOTAL = 8192
NWG_C = 112


def block_allreduce_add(e, v, t0, t1, lds_off, nwaves):
    wave_allreduce(e, "v_add_f32", v, t0, t1)
    e("v_lshlrev_b32 %s, 2, v5" % t0)
    e("ds_write_b32 %s, %s offset:%d" % (t0, v, lds_off))
    e("s_waitcnt lgkmcnt(0)")
    e("s_barrier")
    e("v_mov_b32 %s, 0" % t0)
    e("ds_read_b128 v[60:63], %s offset:%d" % (t0, lds_off))
    e("s_waitcnt lgkmcnt(0)")
    e("v_add_f32 %s, v60, v61" % v)
    e("v_add_f32 %s, %s, v62" % (v, v))
    e("v_add_f32 %s, %s, v63" % (v, v))


def gen_ffn1_kernel():
    e = Emitter()
    e("s_cmp_ge_u32 s2, %d" % NWG_C)
    e("s_cbranch_scc1 L_ffn1_end")
    stamp(e, 0)
    e("s_load_dwordx2 s[24:25], s[0:1], 0")
    e("s_load_dwordx4 s[28:31], s[0:1], 48")
    e("s_load_dwordx2 s[32:33], s[0:1], 88")
    e("v_and_b32 v1, 63, v0")
    e("v_lshrrev_b32 v5, 6, v0")
    e("v_lshrrev_b32 v6, 1, v0")
    e("v_mul_u32_u24 v2, 3584, v6")
    e("v_and_b32 v7, 1, v0")
    e("v_lshlrev_b32 v7, 4, v7")
    e("v_add_u32 v2, v2, v7")
    e("s_and_b32 s37, s2, 7")
    e("s_mul_i32 s37, s37, 14")
    e("s_lshr_b32 s38, s2, 3")
    e("s_add_u32 s36, s37, s38")
    e("s_lshl_b32 s39, s36, 5")
    e("v_add_u32 v2, s39, v2")
    e("v_lshlrev_b32 v3, 3, v0")
    e("v_lshlrev_b32 v4, 2, v0")
    e("s_waitcnt lgkmcnt(0)")
    stamp(e, 1)
    srd(e, 4, 24, 25, 1024)
    srd(e, 8, 28, 29, 512 * 3584)
    srd(e, 12, 30, 31, 512 * 3584)
    srd(e, 20, 32, 33, WS_USED)
    for it in range(4):
        e("s_mov_b32 s40, 0x%x" % (it * 128 * 3584))
        e("buffer_load_dwordx4 v[%d:%d], v2, s[8:11], s40 offen%s" % (64 + 4 * it, 67 + 4 * it, WMOD))
        e("buffer_load_dwordx4 v[%d:%d], v2, s[12:15], s40 offen%s" % (80 + 4 * it, 83 + 4 * it, WMOD))
    for hh in range(32):
        e("s_mov_b32 s40, 0x%x" % (WS_P + hh * 2048))
        e("buffer_load_dwordx2 v[%d:%d], v3, s[20:23], s40 offen" % (96 + 2 * hh, 97 + 2 * hh))
    e("buffer_load_dword v8, v4, s[4:7], 0 offen")
    e("s_waitcnt vmcnt(0)")
    stamp(e, 2)
    e("v_add_f32 v10, v96, v98")
    e("v_add_f32 v11, v97, v99")
    for hh in range(2, 32):
        e("v_add_f32 v10, v10, v%d" % (96 + 2 * hh))
        e("v_add_f32 v11, v11, v%d" % (97 + 2 * hh))
    bf16_round(e, "v10", "v10")
    bf16_round(e, "v11", "v11")
    e("v_lshlrev_b32 v12, 16, v8")
    e("v_and_b32 v13, 0xffff0000, v8")
    e("v_add_f32 v10, v12, v10")
    e("v_add_f32 v11, v13, v11")
    bf16_round(e, "v10", "v10")
    bf16_round(e, "v11", "v11")
    e("s_mov_b32 s41, 0x%x" % WS_H)
    e("s_cmp_lg_u32 s2, 0")
    e("s_cbranch_scc1 L_ffn1_noh")
    e("buffer_store_dwordx2 v[10:11], v3, s[20:23], s41 offen")
    e.label("L_ffn1_noh")
    e("v_add_f32 v14, v10, v11")
    block_allreduce_add(e, "v14", "v15", "v16", LDS_C_RED, 4)
    e("v_mul_f32 v14, %s, v14" % INV512)
    e("v_sub_f32 v15, v10, v14")
    e("v_sub_f32 v16, v11, v14")
    e("v_mul_f32 v17, v15, v15")
    e("v_fma_f32 v17, v16, v16, v17")
    block_allreduce_add(e, "v17", "v15", "v16", LDS_C_RED + 16, 4)
    e("v_mul_f32 v17, %s, v17" % INV512)
    bf16_round(e, "v18", "v14")
    bf16_round(e, "v19", "v17")
    e("v_add_f32 v19, %s, v19" % EPS)
    bf16_round(e, "v19", "v19")
    e("v_sqrt_f32 v19, v19")
    bf16_round(e, "v19", "v19")
    for k in range(2):
        e("v_sub_f32 v20, v%d, v18" % (10 + k))
        bf16_round(e, "v20", "v20")
        fdiv(e, "v21", "v20", "v19", "v22", "v23")
        bf16_pattern(e, "v%d" % (24 + k), "v21")
    e("ds_write_b64 v3, v[24:25] offset:%d" % LDS_C_LN)
    e("s_waitcnt lgkmcnt(0)")
    e("s_barrier")
    stamp(e, 3)
    e("v_lshlrev_b32 v26, 2, v6")
    for it in range(4):
        e("ds_read_b32 v%d, v26 offset:%d" % (28 + it, LDS_C_LN + 512 * it))
    e("s_waitcnt lgkmcnt(0)")
    for it in range(4):
        e("v_lshlrev_b32 v27, 16, v%d" % (28 + it))
        for m in range(2):
            for ee in range(4):
                w = 64 + 16 * m + 4 * it + ee
                a = 32 + 8 * m + 2 * ee
                if it == 0:
                    e("v_dot2_f32_bf16 v%d, v%d, v%d, 0" % (a, 28 + it, w))
                    e("v_dot2_f32_bf16 v%d, v27, v%d, 0" % (a + 1, w))
                else:
                    e("v_dot2c_f32_bf16 v%d, v%d, v%d" % (a, 28 + it, w))
                    e("v_dot2c_f32_bf16 v%d, v27, v%d" % (a + 1, w))
    for k in range(16):
        e("v_add_f32_dpp v%d, v%d, v%d quad_perm:[2,3,0,1] row_mask:0xf bank_mask:0xf" % (32 + k, 32 + k, 32 + k))
    for k in range(16):
        e("v_add_f32_dpp v%d, v%d, v%d row_ror:4 row_mask:0xf bank_mask:0xf" % (32 + k, 32 + k, 32 + k))
    for k in range(16):
        e("v_add_f32_dpp v%d, v%d, v%d row_ror:8 row_mask:0xf bank_mask:0xf" % (32 + k, 32 + k, 32 + k))
    e("v_lshrrev_b32 v26, 4, v0")
    e("v_lshlrev_b32 v26, 7, v26")
    e("v_lshlrev_b32 v27, 2, v7")
    e("v_add_u32 v26, v26, v27")
    for k in range(4):
        e("ds_write_b128 v26, v[%d:%d] offset:%d" % (32 + 4 * k, 35 + 4 * k, LDS_C_R + 16 * k))
    e("s_waitcnt lgkmcnt(0)")
    e("s_barrier")
    stamp(e, 4)
    e("v_cmp_gt_u32 vcc, 16, v0")
    e("s_and_saveexec_b64 s[42:43], vcc")
    e("s_cbranch_execz L_ffn1_restore")
    e("v_lshrrev_b32 v26, 3, v0")
    e("v_lshlrev_b32 v26, 6, v26")
    e("v_and_b32 v27, 7, v0")
    e("v_lshlrev_b32 v27, 2, v27")
    e("v_add_u32 v26, v26, v27")
    for k in range(16):
        e("ds_read_b32 v%d, v26 offset:%d" % (96 + k, LDS_C_R + 128 * k))
        e("ds_read_b32 v%d, v26 offset:%d" % (112 + k, LDS_C_R + 128 * k + 32))
    e("s_waitcnt lgkmcnt(0)")
    e("v_add_f32 v28, v96, v97")
    e("v_add_f32 v29, v112, v113")
    for k in range(2, 16):
        e("v_add_f32 v28, v28, v%d" % (96 + k))
        e("v_add_f32 v29, v29, v%d" % (112 + k))
    bf16_round(e, "v28", "v28")
    bf16_round(e, "v29", "v29")
    e("v_mul_f32 v30, v28, v28")
    e("v_mul_f32 v30, v30, v28")
    e("s_mov_b32 s40, %s" % KKAPPA)
    e("v_fma_f32 v30, v30, s40, v28")
    e("v_mul_f32 v30, %s, v30" % KBETA)
    e("v_mul_f32 v30, 0xc038aa3b, v30")
    e("v_exp_f32 v30, v30")
    e("v_add_f32 v30, 1.0, v30")
    fdiv(e, "v31", "v28", "v30", "v32", "v33")
    bf16_round(e, "v31", "v31")
    e("v_mul_f32 v31, v31, v29")
    bf16_pattern(e, "v31", "v31")
    e("v_lshlrev_b32 v26, 2, v0")
    e("s_lshl_b32 s39, s36, 6")
    e("s_add_u32 s39, s39, 0x%x" % WS_ACT)
    e("v_add_u32 v26, s39, v26")
    e("buffer_store_dword v31, v26, s[20:23], 0 offen")
    e.label("L_ffn1_restore")
    e("s_or_b64 exec, exec, s[42:43]")
    stamp(e, 5)
    stamp_dump(e, 6, "ffn1")
    e.label("L_ffn1_end")
    e("s_endpgm")
    return e.text()


LDS_D_R = 0
LDS_D_TOTAL = 4096
NWG_D = 64


def gen_ffn2_kernel():
    e = Emitter()
    e("s_cmp_ge_u32 s2, %d" % NWG_D)
    e("s_cbranch_scc1 L_ffn2_end")
    e("s_load_dwordx2 s[24:25], s[0:1], 64")
    e("s_load_dwordx2 s[26:27], s[0:1], 72")
    e("s_load_dwordx2 s[32:33], s[0:1], 88")
    e("v_and_b32 v1, 63, v0")
    e("s_and_b32 s37, s2, 7")
    e("s_lshl_b32 s37, s37, 3")
    e("s_lshr_b32 s38, s2, 3")
    e("s_add_u32 s36, s37, s38")
    e("v_lshlrev_b32 v2, 10, v0")
    e("s_lshl_b32 s39, s36, 4")
    e("v_add_u32 v2, s39, v2")
    e("v_lshlrev_b32 v3, 2, v0")
    e("s_waitcnt lgkmcnt(0)")
    srd(e, 4, 24, 25, 1792 * 1024)
    srd(e, 8, 26, 27, 1024)
    srd(e, 20, 32, 33, WS_USED)
    for it in range(7):
        e("s_mov_b32 s40, 0x%x" % (it * 262144))
        e("buffer_load_dwordx4 v[%d:%d], v2, s[4:7], s40 offen%s" % (64 + 4 * it, 67 + 4 * it, WMOD))
    for it in range(7):
        e("s_mov_b32 s40, 0x%x" % (WS_ACT + it * 1024))
        e("buffer_load_dword v%d, v3, s[20:23], s40 offen" % (8 + it))
    e("v_and_b32 v4, 7, v0")
    e("v_lshlrev_b32 v4, 2, v4")
    e("s_lshl_b32 s39, s36, 5")
    e("s_add_u32 s39, s39, 0x%x" % WS_H)
    e("v_add_u32 v4, s39, v4")
    e("buffer_load_dword v15, v4, s[20:23], 0 offen")
    e("s_waitcnt vmcnt(0)")
    for it in range(7):
        e("v_lshlrev_b32 v16, 16, v%d" % (8 + it))
        for ee in range(4):
            w = 64 + 4 * it + ee
            if it == 0:
                e("v_dot2_f32_bf16 v%d, v%d, v%d, 0" % (32 + 2 * ee, 8 + it, w))
                e("v_dot2_f32_bf16 v%d, v16, v%d, 0" % (33 + 2 * ee, w))
            else:
                e("v_dot2c_f32_bf16 v%d, v%d, v%d" % (32 + 2 * ee, 8 + it, w))
                e("v_dot2c_f32_bf16 v%d, v16, v%d" % (33 + 2 * ee, w))
    for r in (1, 2, 4, 8):
        for k in range(8):
            e("v_add_f32_dpp v%d, v%d, v%d row_ror:%d row_mask:0xf bank_mask:0xf" % (32 + k, 32 + k, 32 + k, r))
    e("v_lshrrev_b32 v26, 4, v0")
    e("v_lshlrev_b32 v26, 5, v26")
    e("ds_write_b128 v26, v[32:35] offset:%d" % LDS_D_R)
    e("ds_write_b128 v26, v[36:39] offset:%d" % (LDS_D_R + 16))
    e("s_waitcnt lgkmcnt(0)")
    e("s_barrier")
    e("v_cmp_gt_u32 vcc, 8, v0")
    e("s_and_saveexec_b64 s[42:43], vcc")
    e("s_cbranch_execz L_ffn2_restore")
    e("v_lshlrev_b32 v26, 2, v0")
    for g in range(16):
        e("ds_read_b32 v%d, v26 offset:%d" % (40 + g, LDS_D_R + 32 * g))
    e("s_waitcnt lgkmcnt(0)")
    e("v_add_f32 v27, v40, v41")
    for g in range(2, 16):
        e("v_add_f32 v27, v27, v%d" % (40 + g))
    bf16_round(e, "v27", "v27")
    e("v_add_f32 v27, v15, v27")
    e("v_cvt_pk_bf16_f32 v27, v27, 0")
    e("v_lshlrev_b32 v28, 1, v0")
    e("s_lshl_b32 s39, s36, 4")
    e("v_add_u32 v28, s39, v28")
    e("buffer_store_short v27, v28, s[8:11], 0 offen")
    e.label("L_ffn2_restore")
    e("s_or_b64 exec, exec, s[42:43]")
    e.label("L_ffn2_end")
    e("s_endpgm")
    return e.text()


HEADER = """; Kernarg layout for this problem (96 bytes, ptrs only, base s[0:1]):
"""


def kd(name, vgpr, sgpr=102):
    acc = (vgpr + 3) // 4 * 4
    return """.amdhsa_kernel %s
  .amdhsa_next_free_vgpr %d
  .amdhsa_next_free_sgpr %d
  .amdhsa_accum_offset %d
  .amdhsa_group_segment_fixed_size 0
  .amdhsa_kernarg_size 96
  .amdhsa_user_sgpr_count 2
  .amdhsa_user_sgpr_kernarg_segment_ptr 1
  .amdhsa_system_sgpr_workgroup_id_x 1
.end_amdhsa_kernel
""" % (name, vgpr, sgpr, acc)


def main(out):
    s = HEADER
    s += "; @launch kernel=attn_kernel grid=(256,1,1) block=(512,1,1) lds=%d\n" % LDS_A_TOTAL
    s += "; @launch kernel=wo_kernel grid=(256,1,1) block=(256,1,1) lds=%d\n" % LDS_B_TOTAL
    s += "; @launch kernel=ffn1_kernel grid=(%d,1,1) block=(256,1,1) lds=%d\n" % (NWG_C, LDS_C_TOTAL)
    s += "; @launch kernel=ffn2_kernel grid=(%d,1,1) block=(256,1,1) lds=%d\n" % (NWG_D, LDS_D_TOTAL)
    s += '.amdgcn_target "amdgcn-amd-amdhsa--gfx950"\n.text\n'
    for name, body in (("attn_kernel", gen_attn_kernel()), ("wo_kernel", gen_wo_kernel()),
                       ("ffn1_kernel", gen_ffn1_kernel()), ("ffn2_kernel", gen_ffn2_kernel())):
        s += ".globl %s\n.p2align 8\n.type %s,@function\n%s:\n" % (name, name, name)
        s += body
    s += '.section .rodata,"a"\n'
    for name, v in (("attn_kernel", 256), ("wo_kernel", 80), ("ffn1_kernel", 160), ("ffn2_kernel", 96)):
        s += ".p2align 6\n" + kd(name, v, 96)
    open(out, "w").write(s)


if __name__ == "__main__":
    main(sys.argv[1] if len(sys.argv) > 1 else "sequential_preLN__mha_block_cached__geglu_ffn__decode.s")
```

```python
import sys, os
sys.path.insert(0, os.path.dirname(__file__))
from asmgen import Emitter, wave_allreduce, bf16_round, bf16_pattern, fdiv

DEBUG = bool(os.environ.get("GEN_DEBUG"))
KVMOD = os.environ.get("GEN_KVMOD", "")
WMOD = os.environ.get("GEN_WMOD", "")
PREF = os.environ.get("GEN_PREF", "1") == "1"
LATEK = int(os.environ.get("GEN_LATEK", "0"))
CPREF = os.environ.get("GEN_CPREF", "1") == "1"
LOG2E = "0x3fb8aa3b"
SCALE = "0x3db504f3"
EPS = "0x3727c5ac"
INV512 = "0x3b000000"
KKAPPA = "0x3d372713"
KBETA = "0x3f4c422a"

WS_O = 0x0
WS_ML = 0x20000
WS_P = 0x40000
WS_H = 0x50000
WS_ACT = 0x51000
WS_USED = 0x60000


def srd(e, d, lo, hi, nbytes):
    e("s_mov_b32 s%d, s%d" % (d, lo))
    e("s_mov_b32 s%d, s%d" % (d + 1, hi))
    e("s_mov_b32 s%d, 0x%x" % (d + 2, nbytes))
    e("s_mov_b32 s%d, 0x00020000" % (d + 3))


STAMP = bool(os.environ.get("GEN_STAMP"))


def stamp(e, idx):
    if STAMP:
        e("s_memrealtime s[%d:%d]" % (60 + 2 * idx, 61 + 2 * idx))


def stamp_dump(e, n, tag):
    if STAMP:
        e("s_waitcnt lgkmcnt(0)")
        e("s_load_dwordx2 s[50:51], s[0:1], 80")
        e("s_waitcnt lgkmcnt(0)")
        srd(e, 52, 50, 51, 256)
        e("s_cmp_lg_u32 s2, 0")
        e("s_cbranch_scc1 L_stamp_skip_%s" % tag)
        e("v_cmp_eq_u32 vcc, 0, v0")
        e("s_and_saveexec_b64 s[42:43], vcc")
        for i in range(n):
            e("v_mov_b32 v60, s%d" % (60 + 2 * i))
            e("v_mov_b32 v61, 0")
            e("buffer_store_dword v60, v61, s[52:55], 0 offen offset:%d" % (4 * i))
        e("s_or_b64 exec, exec, s[42:43]")
        e.label("L_stamp_skip_%s" % tag)


STAMPA = bool(os.environ.get("GEN_STAMPA"))


def stampA(e, idx):
    if STAMPA:
        e("s_memrealtime s[%d:%d]" % (80 + 2 * idx, 81 + 2 * idx))


def stampA_dump(e):
    if STAMPA:
        e("s_waitcnt lgkmcnt(0)")
        e("s_cmp_lg_u32 s36, 0")
        e("s_cbranch_scc1 L_stampA_skip")
        e("s_mov_b32 s22, 0x200000")
        e("s_lshl_b32 s39, s2, 5")
        e("s_add_u32 s39, s39, 0x100000")
        e("v_cmp_eq_u32 vcc, 0, v0")
        e("s_and_saveexec_b64 s[42:43], vcc")
        for i in range(6):
            e("v_mov_b32 v60, s%d" % (80 + 2 * i))
            e("v_mov_b32 v61, s39")
            e("buffer_store_dword v60, v61, s[20:23], 0 offen offset:%d" % (4 * i))
        e("s_or_b64 exec, exec, s[42:43]")
        e.label("L_stampA_skip")


def decode_hc(e):
    e("s_and_b32 s37, s2, 7")
    e("s_lshr_b32 s38, s2, 3")
    e("s_and_b32 s38, s38, 3")
    e("s_lshl_b32 s34, s37, 2")
    e("s_add_u32 s34, s34, s38")
    e("s_lshr_b32 s35, s2, 5")


def lds_sum32(e, dst, vaddr, base, r0):
    for half in range(2):
        for g in range(16):
            e("ds_read_b32 v%d, %s offset:%d" % (r0 + g, vaddr, base + 512 * (half * 16 + g)))
        e("s_waitcnt lgkmcnt(0)")
        for g in range(16):
            if half == 0 and g == 0:
                e("v_mov_b32 %s, v%d" % (dst, r0))
            else:
                e("v_add_f32 %s, %s, v%d" % (dst, dst, r0 + g))


LDS_LN = 0
LDS_Q = 16384
LDS_QB = 32768
LDS_M = 33024
LDS_L = 33280
LDS_A_TOTAL = 36864

B0, B1, B2 = 64, 128, 192


def kv_loads(e, srd_base, buf, tile):
    for jg in range(4):
        e("s_mov_b32 s40, 0x%x" % (tile * 131072 + jg * 4096))
        for j4 in range(4):
            j = jg * 4 + j4
            e("buffer_load_dwordx4 v[%d:%d], v2, s[%d:%d], s40 offen offset:%d%s"
              % (buf + 4 * j, buf + 4 * j + 3, srd_base, srd_base + 3, j4 * 1024, KVMOD))


def k_step(e, buf, sc, vm_wait, next_issue):
    e("s_waitcnt vmcnt(%d)" % vm_wait)
    for ee in range(4):
        for j in range(16):
            if ee == 0:
                e("v_dot2_f32_bf16 v%d, v%d, v32, 0" % (16 + j, buf + 4 * j))
            else:
                e("v_dot2c_f32_bf16 v%d, v%d, v%d" % (16 + j, buf + 4 * j + ee, 32 + ee))
    next_issue()
    for j in range(8):
        e("v_add_f32_dpp v%d, v%d, v%d row_ror:8 row_mask:0xf bank_mask:0x3" % (16 + j, 16 + j, 16 + j))
        e("v_add_f32_dpp v%d, v%d, v%d row_ror:8 row_mask:0xf bank_mask:0xc" % (16 + j, 24 + j, 24 + j))
    for j in range(4):
        e("v_add_f32_dpp v%d, v%d, v%d row_half_mirror row_mask:0xf bank_mask:0x5" % (16 + j, 16 + j, 16 + j))
        e("v_add_f32_dpp v%d, v%d, v%d row_half_mirror row_mask:0xf bank_mask:0xa" % (16 + j, 20 + j, 20 + j))
    for j in range(4):
        e("v_add_f32_dpp v%d, v%d, v%d quad_perm:[1,0,3,2] row_mask:0xf bank_mask:0xf" % (16 + j, 16 + j, 16 + j))
    for j in range(4):
        e("v_add_f32_dpp v%d, v%d, v%d quad_perm:[2,3,0,1] row_mask:0xf bank_mask:0xf" % (16 + j, 16 + j, 16 + j))
    e("v_cndmask_b32 v%d, v16, v17, s[44:45]" % sc)
    e("v_cndmask_b32 v%d, v%d, v18, s[46:47]" % (sc, sc))
    e("v_cndmask_b32 v%d, v%d, v19, s[48:49]" % (sc, sc))
    bf16_round(e, "v%d" % sc, "v%d" % sc)
    e("v_mul_f32 v%d, %s, v%d" % (sc, SCALE, sc))
    bf16_round(e, "v%d" % sc, "v%d" % sc)


def v_step(e, buf, tile, vm_wait, next_issue):
    e("s_waitcnt vmcnt(%d)" % vm_wait)
    plo, phi = 40 + 2 * tile, 41 + 2 * tile
    for j in range(16):
        for ee in range(4):
            e("v_dot2c_f32_bf16_dpp v%d, v%d, v%d row_newbcast:%d row_mask:0xf bank_mask:0xf"
              % (48 + 2 * ee, plo, buf + 4 * j + ee, j))
            e("v_dot2c_f32_bf16_dpp v%d, v%d, v%d row_newbcast:%d row_mask:0xf bank_mask:0xf"
              % (49 + 2 * ee, phi, buf + 4 * j + ee, j))
    next_issue()


def prefetch_tail_weights(e):
    e("s_and_b32 s37, s2, 7")
    e("s_lshr_b32 s38, s2, 3")
    e("s_lshl_b32 s39, s37, 19")
    e("s_lshl_b32 s40, s38, 14")
    e("s_add_u32 s39, s39, s40")
    e("v_lshlrev_b32 v60, 6, v0")
    e("v_add_u32 v60, s39, v60")
    e("s_cmp_ge_u32 s36, 4")
    e("s_cbranch_scc1 L_pref_gu")
    e("buffer_load_dword v61, v60, s[52:55], 0 offen")
    e("s_branch L_pref_done")
    e.label("L_pref_gu")
    e("v_subrev_u32 v60, 256, v0")
    e("v_lshrrev_b32 v61, 4, v60")
    e("s_lshl_b32 s39, s38, 4")
    e("v_add_u32 v61, s39, v61")
    e("v_mul_u32_u24 v61, 3584, v61")
    e("v_and_b32 v62, 7, v60")
    e("v_lshlrev_b32 v62, 6, v62")
    e("v_add_u32 v61, v61, v62")
    e("s_mul_i32 s39, s37, 448")
    e("s_and_b32 s39, s39, 0xffffff80")
    e("v_add_u32 v61, s39, v61")
    e("buffer_load_dword v62, v61, s[56:59], 0 offen")
    e("buffer_load_dword v63, v61, s[60:63], 0 offen")
    e("s_mul_i32 s39, s38, 56")
    e("v_add_u32 v61, s39, v60")
    e("v_lshlrev_b32 v61, 10, v61")
    e("s_lshl_b32 s39, s37, 7")
    e("v_add_u32 v61, s39, v61")
    e("v_cmp_gt_u32 vcc, 56, v60")
    e("s_and_saveexec_b64 s[42:43], vcc")
    e("s_cbranch_execz L_pref_dskip")
    e("buffer_load_dword v62, v61, s[64:67], 0 offen")
    e("buffer_load_dword v63, v61, s[64:67], 0 offen offset:64")
    e.label("L_pref_dskip")
    e("s_or_b64 exec, exec, s[42:43]")
    e.label("L_pref_done")
    if CPREF:
        e("s_cmp_lg_u32 s36, 3")
        e("s_cbranch_scc1 L_cpref_done")
        e("s_getpc_b64 s[76:77]")
        e.raw("L_cpref_pc:")
        e("s_add_u32 s76, s76, wo_kernel-L_cpref_pc")
        e("s_addc_u32 s77, s77, 0")
        e("s_mov_b32 s78, 8192")
        e("s_mov_b32 s79, 0x00020000")
        e("v_lshlrev_b32 v60, 6, v1")
        e("buffer_load_dword v61, v60, s[76:79], 0 offen")
        e("buffer_load_dword v62, v60, s[76:79], 0 offen offset:4032")
        e.label("L_cpref_done")
    return 0


def gen_attn_kernel():
    e = Emitter()
    e("s_cmp_ge_u32 s2, 256")
    e("s_cbranch_scc1 L_attn_end")
    stampA(e, 0)
    e("s_load_dwordx8 s[24:31], s[0:1], 0")
    e("s_load_dwordx2 s[32:33], s[0:1], 88")
    e("s_load_dwordx2 s[68:69], s[0:1], 32")
    e("s_load_dwordx4 s[72:75], s[0:1], 48")
    e("s_load_dwordx2 s[70:71], s[0:1], 64")
    decode_hc(e)
    e("v_and_b32 v1, 63, v0")
    e("v_lshrrev_b32 v5, 6, v0")
    e("v_readfirstlane_b32 s36, v5")
    e("s_lshl_b32 s39, s35, 19")
    e("v_lshlrev_b32 v6, 14, v5")
    e("v_lshlrev_b32 v2, 4, v1")
    e("v_add_u32 v2, v2, v6")
    e("v_add_u32 v2, s39, v2")
    e("v_lshrrev_b32 v7, 4, v1")
    e("v_lshlrev_b32 v8, 6, v5")
    e("v_add_u32 v7, v7, v8")
    e("v_lshlrev_b32 v3, 13, v7")
    e("v_and_b32 v6, 15, v1")
    e("v_lshlrev_b32 v6, 4, v6")
    e("v_add_u32 v3, v3, v6")
    e("s_lshl_b32 s39, s34, 8")
    e("v_add_u32 v3, s39, v3")
    e("v_lshlrev_b32 v4, 4, v1")
    e("s_mov_b32 s44, 0x22222222")
    e("s_mov_b32 s45, 0x22222222")
    e("s_mov_b32 s46, 0x44444444")
    e("s_mov_b32 s47, 0x44444444")
    e("s_mov_b32 s48, 0x88888888")
    e("s_mov_b32 s49, 0x88888888")
    e("s_waitcnt lgkmcnt(0)")
    srd(e, 4, 24, 25, 1024)
    e("s_lshl_b32 s39, s34, 22")
    e("s_add_u32 s26, s26, s39")
    e("s_addc_u32 s27, s27, 0")
    e("s_add_u32 s28, s28, s39")
    e("s_addc_u32 s29, s29, 0")
    srd(e, 8, 26, 27, 0x400000)
    srd(e, 12, 28, 29, 0x400000)
    srd(e, 16, 30, 31, 0x400000)
    srd(e, 20, 32, 33, WS_USED)
    srd(e, 52, 68, 69, 0x400000)
    srd(e, 56, 72, 73, 512 * 3584)
    srd(e, 60, 74, 75, 512 * 3584)
    srd(e, 64, 70, 71, 1792 * 1024)
    e("buffer_load_dwordx4 v[8:11], v4, s[4:7], 0 offen")
    for it in range(16):
        e("s_mov_b32 s40, 0x%x" % (it * 32768))
        e("buffer_load_dwordx4 v[%d:%d], v3, s[16:19], s40 offen%s" % (B2 + 4 * it, B2 + 4 * it + 3, WMOD))
    if LATEK < 2:
        kv_loads(e, 8, B0, 0)
    if LATEK < 1:
        kv_loads(e, 8, B1, 1)
    e("s_waitcnt vmcnt(%d)" % (48 - 16 * min(LATEK, 2)))
    for k in range(4):
        e("v_lshlrev_b32 v%d, 16, v%d" % (12 + 2 * k, 8 + k))
        e("v_and_b32 v%d, 0xffff0000, v%d" % (13 + 2 * k, 8 + k))
    e("v_add_f32 v20, v12, v13")
    for k in range(2, 8):
        e("v_add_f32 v20, v20, v%d" % (12 + k))
    wave_allreduce(e, "v_add_f32", "v20", "v21", "v22")
    e("v_mul_f32 v20, %s, v20" % INV512)
    e("v_mov_b32 v23, 0")
    for k in range(8):
        e("v_sub_f32 v24, v%d, v20" % (12 + k))
        e("v_fma_f32 v23, v24, v24, v23")
    wave_allreduce(e, "v_add_f32", "v23", "v21", "v22")
    e("v_mul_f32 v23, %s, v23" % INV512)
    bf16_round(e, "v24", "v20")
    bf16_round(e, "v25", "v23")
    e("v_add_f32 v25, %s, v25" % EPS)
    bf16_round(e, "v25", "v25")
    e("v_sqrt_f32 v25, v25")
    bf16_round(e, "v25", "v25")
    for k in range(8):
        e("v_sub_f32 v26, v%d, v24" % (12 + k))
        bf16_round(e, "v26", "v26")
        fdiv(e, "v27", "v26", "v25", "v28", "v29")
        bf16_pattern(e, "v%d" % (40 + k), "v27")
    e("v_lshlrev_b32 v26, 11, v5")
    e("v_lshlrev_b32 v27, 5, v1")
    e("v_add_u32 v26, v26, v27")
    e("ds_write_b128 v26, v[40:43] offset:%d" % LDS_LN)
    e("ds_write_b128 v26, v[44:47] offset:%d" % (LDS_LN + 16))
    e("v_lshlrev_b32 v59, 2, v7")
    e("v_lshlrev_b32 v58, 11, v5")
    e("v_add_u32 v59, v59, v58")
    e("s_waitcnt lgkmcnt(0)")
    for it in range(16):
        e("ds_read_b32 v%d, v59 offset:%d" % (16 + it, LDS_LN + 16 * it))
    e("s_waitcnt vmcnt(%d) lgkmcnt(0)" % (32 - 16 * min(LATEK, 2)))
    stampA(e, 1)
    if LATEK == 2:
        kv_loads(e, 8, B0, 0)
    if LATEK in (1, 2):
        kv_loads(e, 8, B1, 1)
    for it in range(16):
        e("v_lshlrev_b32 v57, 16, v%d" % (16 + it))
        for ee in range(4):
            w = B2 + 4 * it + ee
            if it == 0:
                e("v_dot2_f32_bf16 v%d, v%d, v%d, 0" % (48 + 2 * ee, 16 + it, w))
                e("v_dot2_f32_bf16 v%d, v57, v%d, 0" % (49 + 2 * ee, w))
            else:
                e("v_dot2c_f32_bf16 v%d, v%d, v%d" % (48 + 2 * ee, 16 + it, w))
                e("v_dot2c_f32_bf16 v%d, v57, v%d" % (49 + 2 * ee, w))
    if LATEK == 3:
        kv_loads(e, 8, B0, 0)
    else:
        kv_loads(e, 8, B2, 2)
    e("v_lshlrev_b32 v26, 5, v0")
    e("ds_write_b128 v26, v[48:51] offset:%d" % LDS_Q)
    e("ds_write_b128 v26, v[52:55] offset:%d" % (LDS_Q + 16))
    e("s_waitcnt lgkmcnt(0)")
    e("s_barrier")
    e("s_cmp_ge_u32 s36, 2")
    e("s_cbranch_scc1 L_attn_q_done")
    e("v_lshlrev_b32 v59, 2, v0")
    lds_sum32(e, "v57", "v59", LDS_Q, 16)
    e("v_cvt_pk_bf16_f32 v57, v57, 0")
    e("v_lshlrev_b32 v28, 1, v0")
    e("ds_write_b16 v28, v57 offset:%d" % LDS_QB)
    e("s_waitcnt lgkmcnt(0)")
    e.label("L_attn_q_done")
    e("s_barrier")
    e("ds_read_b128 v[32:35], v6 offset:%d" % LDS_QB)
    e("s_waitcnt lgkmcnt(0)")
    if DEBUG:
        e("s_load_dwordx2 s[50:51], s[0:1], 80")
        e("s_waitcnt lgkmcnt(0)")
        srd(e, 52, 50, 51, 256)
        e("s_cmp_lg_u32 s2, 0")
        e("s_cbranch_scc1 L_dbg_skip")
        e("v_cmp_gt_u32 vcc, 16, v0")
        e("s_and_saveexec_b64 s[42:43], vcc")
        e("v_lshlrev_b32 v58, 4, v0")
        e("buffer_store_dwordx4 v[32:35], v58, s[52:55], 0 offen")
        e("s_or_b64 exec, exec, s[42:43]")
        e.label("L_dbg_skip")
    if LATEK == 3:
        kv_loads(e, 8, B1, 1)
        kv_loads(e, 8, B2, 2)
    stampA(e, 2)
    k_step(e, B0, 36, 32, lambda: kv_loads(e, 8, B0, 3))
    k_step(e, B1, 37, 32, lambda: kv_loads(e, 12, B1, 0))
    k_step(e, B2, 38, 32, lambda: kv_loads(e, 12, B2, 1))
    k_step(e, B0, 39, 32, lambda: kv_loads(e, 12, B0, 2))
    e("v_max3_f32 v57, v36, v37, v38")
    e("v_max_f32 v57, v57, v39")
    wave_allreduce(e, "v_max_f32", "v57", "v58", "v59")
    e("v_mov_b32 v56, 0")
    for i in range(4):
        e("v_sub_f32 v58, v%d, v57" % (36 + i))
        e("v_mul_f32 v58, %s, v58" % LOG2E)
        e("v_exp_f32 v58, v58")
        e("v_cvt_pk_bf16_f32 v%d, v58, 0" % (40 + 2 * i))
        e("v_cvt_pk_bf16_f32 v%d, 0, v58" % (41 + 2 * i))
        e("v_add_f32 v56, v56, v%d" % (41 + 2 * i))
    for k in range(8):
        e("v_mov_b32 v%d, 0" % (48 + k))
    stampA(e, 3)
    v_step(e, B1, 0, 32, lambda: kv_loads(e, 12, B1, 3))
    v_step(e, B2, 1, 32, lambda: None)
    v_step(e, B0, 2, 16, lambda: None)
    npre = 0
    if PREF:
        npre = prefetch_tail_weights(e)
    v_step(e, B1, 3, npre, lambda: None)
    stampA(e, 4)
    e("s_lshl_b32 s39, s36, 2")
    e("v_mov_b32 v26, s39")
    e("ds_write_b32 v26, v57 offset:%d" % LDS_M)
    e("s_waitcnt lgkmcnt(0)")
    e("s_barrier")
    e("v_mov_b32 v26, 0")
    e("ds_read_b128 v[16:19], v26 offset:%d" % LDS_M)
    e("ds_read_b128 v[20:23], v26 offset:%d" % (LDS_M + 16))
    e("s_waitcnt lgkmcnt(0)")
    e("v_max3_f32 v24, v16, v17, v18")
    e("v_max3_f32 v24, v24, v19, v20")
    e("v_max3_f32 v24, v24, v21, v22")
    e("v_max_f32 v24, v24, v23")
    e("v_sub_f32 v25, v57, v24")
    e("v_mul_f32 v25, %s, v25" % LOG2E)
    e("v_exp_f32 v25, v25")
    for k in range(8):
        e("v_mul_f32 v%d, v%d, v25" % (48 + k, 48 + k))
    e("v_mul_f32 v56, v56, v25")
    e("v_lshlrev_b32 v26, 5, v0")
    e("ds_write_b128 v26, v[48:51] offset:%d" % LDS_Q)
    e("ds_write_b128 v26, v[52:55] offset:%d" % (LDS_Q + 16))
    e("v_lshlrev_b32 v59, 2, v0")
    e("ds_write_b32 v59, v56 offset:%d" % LDS_L)
    e("s_waitcnt lgkmcnt(0)")
    e("s_barrier")
    e("s_lshl_b32 s39, s34, 3")
    e("s_add_u32 s39, s39, s35")
    e("s_cmp_eq_u32 s36, 2")
    e("s_cbranch_scc1 L_attn_sumL")
    e("s_cmp_ge_u32 s36, 2")
    e("s_cbranch_scc1 L_attn_fin")
    lds_sum32(e, "v57", "v59", LDS_Q, 16)
    e("s_lshl_b32 s40, s39, 9")
    e("v_add_u32 v28, s40, v59")
    e("buffer_store_dword v57, v28, s[20:23], 0 offen offset:%d" % WS_O)
    e("s_branch L_attn_fin")
    e.label("L_attn_sumL")
    e("v_lshlrev_b32 v26, 5, v1")
    e("ds_read_b128 v[16:19], v26 offset:%d" % LDS_L)
    e("ds_read_b128 v[20:23], v26 offset:%d" % (LDS_L + 16))
    e("s_waitcnt lgkmcnt(0)")
    e("v_add_f32 v25, v16, v17")
    for k in range(2, 8):
        e("v_add_f32 v25, v25, v%d" % (16 + k))
    wave_allreduce(e, "v_add_f32", "v25", "v26", "v27")
    e("v_mov_b32 v26, 0")
    e("s_lshl_b32 s40, s39, 3")
    e("s_add_u32 s40, s40, 0x%x" % WS_ML)
    e("v_mov_b32 v26, s40")
    e("v_cmp_eq_u32 vcc, 0, v1")
    e("s_and_saveexec_b64 s[42:43], vcc")
    e("buffer_store_dwordx2 v[24:25], v26, s[20:23], 0 offen")
    e("s_or_b64 exec, exec, s[42:43]")
    e.label("L_attn_fin")
    stampA(e, 5)
    stampA_dump(e)
    e.label("L_attn_end")
    e("s_endpgm")
    return e.text()


LDS_OH = 0
LDS_R = 1024
LDS_B_TOTAL = 8192


def gen_wo_kernel():
    e = Emitter()
    e("s_cmp_ge_u32 s2, 256")
    e("s_cbranch_scc1 L_wo_end")
    e("s_load_dwordx2 s[24:25], s[0:1], 32")
    e("s_load_dwordx2 s[32:33], s[0:1], 88")
    decode_hc(e)
    e("v_and_b32 v1, 63, v0")
    e("v_lshrrev_b32 v5, 3, v0")
    e("v_lshlrev_b32 v2, 10, v5")
    e("v_and_b32 v6, 7, v0")
    e("v_lshlrev_b32 v6, 4, v6")
    e("v_add_u32 v2, v2, v6")
    e("s_lshl_b32 s39, s34, 17")
    e("s_lshl_b32 s40, s35, 7")
    e("s_add_u32 s39, s39, s40")
    e("v_add_u32 v2, s39, v2")
    e("v_and_b32 v7, 127, v0")
    e("v_lshlrev_b32 v3, 2, v7")
    e("s_lshl_b32 s39, s34, 12")
    e("v_add_u32 v3, s39, v3")
    e("s_lshl_b32 s39, s34, 6")
    e("s_add_u32 s39, s39, 0x%x" % WS_ML)
    e("v_mov_b32 v4, s39")
    e("s_waitcnt lgkmcnt(0)")
    srd(e, 4, 24, 25, 0x400000)
    srd(e, 20, 32, 33, WS_USED)
    for it in range(4):
        e("s_mov_b32 s40, 0x%x" % (it * 32768))
        e("buffer_load_dwordx4 v[%d:%d], v2, s[4:7], s40 offen%s" % (64 + 4 * it, 67 + 4 * it, WMOD))
    for k in range(4):
        e("buffer_load_dwordx4 v[%d:%d], v4, s[20:23], 0 offen offset:%d" % (16 + 4 * k, 19 + 4 * k, 16 * k))
    for c in range(8):
        e("buffer_load_dword v%d, v3, s[20:23], 0 offen offset:%d" % (32 + c, WS_O + 512 * c))
    e("s_waitcnt vmcnt(0)")
    e("v_max3_f32 v40, v16, v18, v20")
    e("v_max3_f32 v40, v40, v22, v24")
    e("v_max3_f32 v40, v40, v26, v28")
    e("v_max_f32 v40, v40, v30")
    e("v_mov_b32 v41, 0")
    e("v_mov_b32 v42, 0")
    for c in range(8):
        e("v_sub_f32 v43, v%d, v40" % (16 + 2 * c))
        e("v_mul_f32 v43, %s, v43" % LOG2E)
        e("v_exp_f32 v43, v43")
        e("v_fma_f32 v41, v43, v%d, v41" % (17 + 2 * c))
        e("v_fma_f32 v42, v43, v%d, v42" % (32 + c))
    fdiv(e, "v43", "v42", "v41", "v44", "v45")
    bf16_pattern(e, "v43", "v43")
    e("v_lshlrev_b32 v44, 2, v7")
    e("ds_write_b32 v44, v43 offset:%d" % LDS_OH)
    e("s_waitcnt lgkmcnt(0)")
    e("s_barrier")
    e("v_lshlrev_b32 v44, 2, v5")
    for it in range(4):
        e("ds_read_b32 v%d, v44 offset:%d" % (46 + it, LDS_OH + 128 * it))
    e("s_waitcnt lgkmcnt(0)")
    for it in range(4):
        e("v_lshlrev_b32 v50, 16, v%d" % (46 + it))
        for ee in range(4):
            w = 64 + 4 * it + ee
            if it == 0:
                e("v_dot2_f32_bf16 v%d, v%d, v%d, 0" % (52 + 2 * ee, 46 + it, w))
                e("v_dot2_f32_bf16 v%d, v50, v%d, 0" % (53 + 2 * ee, w))
            else:
                e("v_dot2c_f32_bf16 v%d, v%d, v%d" % (52 + 2 * ee, 46 + it, w))
                e("v_dot2c_f32_bf16 v%d, v50, v%d" % (53 + 2 * ee, w))
    for k in range(8):
        e("v_add_f32_dpp v%d, v%d, v%d row_ror:8 row_mask:0xf bank_mask:0xf" % (52 + k, 52 + k, 52 + k))
    e("v_lshrrev_b32 v44, 4, v0")
    e("v_lshlrev_b32 v44, 8, v44")
    e("v_lshlrev_b32 v45, 1, v6")
    e("v_add_u32 v44, v44, v45")
    e("ds_write_b128 v44, v[52:55] offset:%d" % LDS_R)
    e("ds_write_b128 v44, v[56:59] offset:%d" % (LDS_R + 16))
    e("s_waitcnt lgkmcnt(0)")
    e("s_barrier")
    e("v_cmp_gt_u32 vcc, 64, v0")
    e("s_and_saveexec_b64 s[42:43], vcc")
    e("s_cbranch_execz L_wo_restore")
    e("v_lshlrev_b32 v44, 2, v0")
    for g in range(16):
        e("ds_read_b32 v%d, v44 offset:%d" % (16 + g, LDS_R + 256 * g))
    e("s_waitcnt lgkmcnt(0)")
    e("v_add_f32 v45, v16, v17")
    for g in range(2, 16):
        e("v_add_f32 v45, v45, v%d" % (16 + g))
    e("s_lshl_b32 s39, s34, 11")
    e("s_lshl_b32 s40, s35, 8")
    e("s_add_u32 s39, s39, s40")
    e("s_add_u32 s39, s39, 0x%x" % WS_P)
    e("v_add_u32 v44, s39, v44")
    e("buffer_store_dword v45, v44, s[20:23], 0 offen")
    e.label("L_wo_restore")
    e("s_or_b64 exec, exec, s[42:43]")
    e.label("L_wo_end")
    e("s_endpgm")
    return e.text()


LDS_C_LN = 0
LDS_C_RED = 2048
LDS_C_R = 4096
LDS_C_TOTAL = 8192
NWG_C = 112


def block_allreduce_add(e, v, t0, t1, lds_off, nwaves):
    wave_allreduce(e, "v_add_f32", v, t0, t1)
    e("v_lshlrev_b32 %s, 2, v5" % t0)
    e("ds_write_b32 %s, %s offset:%d" % (t0, v, lds_off))
    e("s_waitcnt lgkmcnt(0)")
    e("s_barrier")
    e("v_mov_b32 %s, 0" % t0)
    e("ds_read_b128 v[60:63], %s offset:%d" % (t0, lds_off))
    e("s_waitcnt lgkmcnt(0)")
    e("v_add_f32 %s, v60, v61" % v)
    e("v_add_f32 %s, %s, v62" % (v, v))
    e("v_add_f32 %s, %s, v63" % (v, v))


def gen_ffn1_kernel():
    e = Emitter()
    e("s_cmp_ge_u32 s2, %d" % NWG_C)
    e("s_cbranch_scc1 L_ffn1_end")
    stamp(e, 0)
    e("s_load_dwordx2 s[24:25], s[0:1], 0")
    e("s_load_dwordx4 s[28:31], s[0:1], 48")
    e("s_load_dwordx2 s[32:33], s[0:1], 88")
    e("v_and_b32 v1, 63, v0")
    e("v_lshrrev_b32 v5, 6, v0")
    e("v_lshrrev_b32 v6, 1, v0")
    e("v_mul_u32_u24 v2, 3584, v6")
    e("v_and_b32 v7, 1, v0")
    e("v_lshlrev_b32 v7, 4, v7")
    e("v_add_u32 v2, v2, v7")
    e("s_and_b32 s37, s2, 7")
    e("s_mul_i32 s37, s37, 14")
    e("s_lshr_b32 s38, s2, 3")
    e("s_add_u32 s36, s37, s38")
    e("s_lshl_b32 s39, s36, 5")
    e("v_add_u32 v2, s39, v2")
    e("v_lshlrev_b32 v3, 3, v0")
    e("v_lshlrev_b32 v4, 2, v0")
    e("s_waitcnt lgkmcnt(0)")
    stamp(e, 1)
    srd(e, 4, 24, 25, 1024)
    srd(e, 8, 28, 29, 512 * 3584)
    srd(e, 12, 30, 31, 512 * 3584)
    srd(e, 20, 32, 33, WS_USED)
    for it in range(4):
        e("s_mov_b32 s40, 0x%x" % (it * 128 * 3584))
        e("buffer_load_dwordx4 v[%d:%d], v2, s[8:11], s40 offen%s" % (64 + 4 * it, 67 + 4 * it, WMOD))
        e("buffer_load_dwordx4 v[%d:%d], v2, s[12:15], s40 offen%s" % (80 + 4 * it, 83 + 4 * it, WMOD))
    for hh in range(32):
        e("s_mov_b32 s40, 0x%x" % (WS_P + hh * 2048))
        e("buffer_load_dwordx2 v[%d:%d], v3, s[20:23], s40 offen" % (96 + 2 * hh, 97 + 2 * hh))
    e("buffer_load_dword v8, v4, s[4:7], 0 offen")
    e("s_waitcnt vmcnt(0)")
    stamp(e, 2)
    e("v_add_f32 v10, v96, v98")
    e("v_add_f32 v11, v97, v99")
    for hh in range(2, 32):
        e("v_add_f32 v10, v10, v%d" % (96 + 2 * hh))
        e("v_add_f32 v11, v11, v%d" % (97 + 2 * hh))
    bf16_round(e, "v10", "v10")
    bf16_round(e, "v11", "v11")
    e("v_lshlrev_b32 v12, 16, v8")
    e("v_and_b32 v13, 0xffff0000, v8")
    e("v_add_f32 v10, v12, v10")
    e("v_add_f32 v11, v13, v11")
    bf16_round(e, "v10", "v10")
    bf16_round(e, "v11", "v11")
    e("s_mov_b32 s41, 0x%x" % WS_H)
    e("s_cmp_lg_u32 s2, 0")
    e("s_cbranch_scc1 L_ffn1_noh")
    e("buffer_store_dwordx2 v[10:11], v3, s[20:23], s41 offen")
    e.label("L_ffn1_noh")
    e("v_add_f32 v14, v10, v11")
    block_allreduce_add(e, "v14", "v15", "v16", LDS_C_RED, 4)
    e("v_mul_f32 v14, %s, v14" % INV512)
    e("v_sub_f32 v15, v10, v14")
    e("v_sub_f32 v16, v11, v14")
    e("v_mul_f32 v17, v15, v15")
    e("v_fma_f32 v17, v16, v16, v17")
    block_allreduce_add(e, "v17", "v15", "v16", LDS_C_RED + 16, 4)
    e("v_mul_f32 v17, %s, v17" % INV512)
    bf16_round(e, "v18", "v14")
    bf16_round(e, "v19", "v17")
    e("v_add_f32 v19, %s, v19" % EPS)
    bf16_round(e, "v19", "v19")
    e("v_sqrt_f32 v19, v19")
    bf16_round(e, "v19", "v19")
    for k in range(2):
        e("v_sub_f32 v20, v%d, v18" % (10 + k))
        bf16_round(e, "v20", "v20")
        fdiv(e, "v21", "v20", "v19", "v22", "v23")
        bf16_pattern(e, "v%d" % (24 + k), "v21")
    e("ds_write_b64 v3, v[24:25] offset:%d" % LDS_C_LN)
    e("s_waitcnt lgkmcnt(0)")
    e("s_barrier")
    stamp(e, 3)
    e("v_lshlrev_b32 v26, 2, v6")
    for it in range(4):
        e("ds_read_b32 v%d, v26 offset:%d" % (28 + it, LDS_C_LN + 512 * it))
    e("s_waitcnt lgkmcnt(0)")
    for it in range(4):
        e("v_lshlrev_b32 v27, 16, v%d" % (28 + it))
        for m in range(2):
            for ee in range(4):
                w = 64 + 16 * m + 4 * it + ee
                a = 32 + 8 * m + 2 * ee
                if it == 0:
                    e("v_dot2_f32_bf16 v%d, v%d, v%d, 0" % (a, 28 + it, w))
                    e("v_dot2_f32_bf16 v%d, v27, v%d, 0" % (a + 1, w))
                else:
                    e("v_dot2c_f32_bf16 v%d, v%d, v%d" % (a, 28 + it, w))
                    e("v_dot2c_f32_bf16 v%d, v27, v%d" % (a + 1, w))
    for k in range(16):
        e("v_add_f32_dpp v%d, v%d, v%d quad_perm:[2,3,0,1] row_mask:0xf bank_mask:0xf" % (32 + k, 32 + k, 32 + k))
    for k in range(16):
        e("v_add_f32_dpp v%d, v%d, v%d row_ror:4 row_mask:0xf bank_mask:0xf" % (32 + k, 32 + k, 32 + k))
    for k in range(16):
        e("v_add_f32_dpp v%d, v%d, v%d row_ror:8 row_mask:0xf bank_mask:0xf" % (32 + k, 32 + k, 32 + k))
    e("v_lshrrev_b32 v26, 4, v0")
    e("v_lshlrev_b32 v26, 7, v26")
    e("v_lshlrev_b32 v27, 2, v7")
    e("v_add_u32 v26, v26, v27")
    for k in range(4):
        e("ds_write_b128 v26, v[%d:%d] offset:%d" % (32 + 4 * k, 35 + 4 * k, LDS_C_R + 16 * k))
    e("s_waitcnt lgkmcnt(0)")
    e("s_barrier")
    stamp(e, 4)
    e("v_cmp_gt_u32 vcc, 16, v0")
    e("s_and_saveexec_b64 s[42:43], vcc")
    e("s_cbranch_execz L_ffn1_restore")
    e("v_lshrrev_b32 v26, 3, v0")
    e("v_lshlrev_b32 v26, 6, v26")
    e("v_and_b32 v27, 7, v0")
    e("v_lshlrev_b32 v27, 2, v27")
    e("v_add_u32 v26, v26, v27")
    for k in range(16):
        e("ds_read_b32 v%d, v26 offset:%d" % (96 + k, LDS_C_R + 128 * k))
        e("ds_read_b32 v%d, v26 offset:%d" % (112 + k, LDS_C_R + 128 * k + 32))
    e("s_waitcnt lgkmcnt(0)")
    e("v_add_f32 v28, v96, v97")
    e("v_add_f32 v29, v112, v113")
    for k in range(2, 16):
        e("v_add_f32 v28, v28, v%d" % (96 + k))
        e("v_add_f32 v29, v29, v%d" % (112 + k))
    bf16_round(e, "v28", "v28")
    bf16_round(e, "v29", "v29")
    e("v_mul_f32 v30, v28, v28")
    e("v_mul_f32 v30, v30, v28")
    e("s_mov_b32 s40, %s" % KKAPPA)
    e("v_fma_f32 v30, v30, s40, v28")
    e("v_mul_f32 v30, %s, v30" % KBETA)
    e("v_mul_f32 v30, 0xc038aa3b, v30")
    e("v_exp_f32 v30, v30")
    e("v_add_f32 v30, 1.0, v30")
    fdiv(e, "v31", "v28", "v30", "v32", "v33")
    bf16_round(e, "v31", "v31")
    e("v_mul_f32 v31, v31, v29")
    bf16_pattern(e, "v31", "v31")
    e("v_lshlrev_b32 v26, 2, v0")
    e("s_lshl_b32 s39, s36, 6")
    e("s_add_u32 s39, s39, 0x%x" % WS_ACT)
    e("v_add_u32 v26, s39, v26")
    e("buffer_store_dword v31, v26, s[20:23], 0 offen")
    e.label("L_ffn1_restore")
    e("s_or_b64 exec, exec, s[42:43]")
    stamp(e, 5)
    stamp_dump(e, 6, "ffn1")
    e.label("L_ffn1_end")
    e("s_endpgm")
    return e.text()


LDS_D_R = 0
LDS_D_TOTAL = 4096
NWG_D = 64


def gen_ffn2_kernel():
    e = Emitter()
    e("s_cmp_ge_u32 s2, %d" % NWG_D)
    e("s_cbranch_scc1 L_ffn2_end")
    e("s_load_dwordx2 s[24:25], s[0:1], 64")
    e("s_load_dwordx2 s[26:27], s[0:1], 72")
    e("s_load_dwordx2 s[32:33], s[0:1], 88")
    e("v_and_b32 v1, 63, v0")
    e("s_and_b32 s37, s2, 7")
    e("s_lshl_b32 s37, s37, 3")
    e("s_lshr_b32 s38, s2, 3")
    e("s_add_u32 s36, s37, s38")
    e("v_lshlrev_b32 v2, 10, v0")
    e("s_lshl_b32 s39, s36, 4")
    e("v_add_u32 v2, s39, v2")
    e("v_lshlrev_b32 v3, 2, v0")
    e("s_waitcnt lgkmcnt(0)")
    srd(e, 4, 24, 25, 1792 * 1024)
    srd(e, 8, 26, 27, 1024)
    srd(e, 20, 32, 33, WS_USED)
    for it in range(7):
        e("s_mov_b32 s40, 0x%x" % (it * 262144))
        e("buffer_load_dwordx4 v[%d:%d], v2, s[4:7], s40 offen%s" % (64 + 4 * it, 67 + 4 * it, WMOD))
    for it in range(7):
        e("s_mov_b32 s40, 0x%x" % (WS_ACT + it * 1024))
        e("buffer_load_dword v%d, v3, s[20:23], s40 offen" % (8 + it))
    e("v_and_b32 v4, 7, v0")
    e("v_lshlrev_b32 v4, 2, v4")
    e("s_lshl_b32 s39, s36, 5")
    e("s_add_u32 s39, s39, 0x%x" % WS_H)
    e("v_add_u32 v4, s39, v4")
    e("buffer_load_dword v15, v4, s[20:23], 0 offen")
    e("s_waitcnt vmcnt(0)")
    for it in range(7):
        e("v_lshlrev_b32 v16, 16, v%d" % (8 + it))
        for ee in range(4):
            w = 64 + 4 * it + ee
            if it == 0:
                e("v_dot2_f32_bf16 v%d, v%d, v%d, 0" % (32 + 2 * ee, 8 + it, w))
                e("v_dot2_f32_bf16 v%d, v16, v%d, 0" % (33 + 2 * ee, w))
            else:
                e("v_dot2c_f32_bf16 v%d, v%d, v%d" % (32 + 2 * ee, 8 + it, w))
                e("v_dot2c_f32_bf16 v%d, v16, v%d" % (33 + 2 * ee, w))
    for r in (1, 2, 4, 8):
        for k in range(8):
            e("v_add_f32_dpp v%d, v%d, v%d row_ror:%d row_mask:0xf bank_mask:0xf" % (32 + k, 32 + k, 32 + k, r))
    e("v_lshrrev_b32 v26, 4, v0")
    e("v_lshlrev_b32 v26, 5, v26")
    e("ds_write_b128 v26, v[32:35] offset:%d" % LDS_D_R)
    e("ds_write_b128 v26, v[36:39] offset:%d" % (LDS_D_R + 16))
    e("s_waitcnt lgkmcnt(0)")
    e("s_barrier")
    e("v_cmp_gt_u32 vcc, 8, v0")
    e("s_and_saveexec_b64 s[42:43], vcc")
    e("s_cbranch_execz L_ffn2_restore")
    e("v_lshlrev_b32 v26, 2, v0")
    for g in range(16):
        e("ds_read_b32 v%d, v26 offset:%d" % (40 + g, LDS_D_R + 32 * g))
    e("s_waitcnt lgkmcnt(0)")
    e("v_add_f32 v27, v40, v41")
    for g in range(2, 16):
        e("v_add_f32 v27, v27, v%d" % (40 + g))
    bf16_round(e, "v27", "v27")
    e("v_add_f32 v27, v15, v27")
    e("v_cvt_pk_bf16_f32 v27, v27, 0")
    e("v_lshlrev_b32 v28, 1, v0")
    e("s_lshl_b32 s39, s36, 4")
    e("v_add_u32 v28, s39, v28")
    e("buffer_store_short v27, v28, s[8:11], 0 offen")
    e.label("L_ffn2_restore")
    e("s_or_b64 exec, exec, s[42:43]")
    e.label("L_ffn2_end")
    e("s_endpgm")
    return e.text()


HEADER = """; Kernarg layout for this problem (96 bytes, ptrs only, base s[0:1]):
"""


def kd(name, vgpr, sgpr=102):
    acc = (vgpr + 3) // 4 * 4
    return """.amdhsa_kernel %s
  .amdhsa_next_free_vgpr %d
  .amdhsa_next_free_sgpr %d
  .amdhsa_accum_offset %d
  .amdhsa_group_segment_fixed_size 0
  .amdhsa_kernarg_size 96
  .amdhsa_user_sgpr_count 2
  .amdhsa_user_sgpr_kernarg_segment_ptr 1
  .amdhsa_system_sgpr_workgroup_id_x 1
.end_amdhsa_kernel
""" % (name, vgpr, sgpr, acc)


def main(out):
    s = HEADER
    s += "; @launch kernel=attn_kernel grid=(256,1,1) block=(512,1,1) lds=%d\n" % LDS_A_TOTAL
    s += "; @launch kernel=wo_kernel grid=(256,1,1) block=(256,1,1) lds=%d\n" % LDS_B_TOTAL
    s += "; @launch kernel=ffn1_kernel grid=(%d,1,1) block=(256,1,1) lds=%d\n" % (NWG_C, LDS_C_TOTAL)
    s += "; @launch kernel=ffn2_kernel grid=(%d,1,1) block=(256,1,1) lds=%d\n" % (NWG_D, LDS_D_TOTAL)
    s += '.amdgcn_target "amdgcn-amd-amdhsa--gfx950"\n.text\n'
    for name, body in (("attn_kernel", gen_attn_kernel()), ("wo_kernel", gen_wo_kernel()),
                       ("ffn1_kernel", gen_ffn1_kernel()), ("ffn2_kernel", gen_ffn2_kernel())):
        s += ".globl %s\n.p2align 8\n.type %s,@function\n%s:\n" % (name, name, name)
        s += body
    s += '.section .rodata,"a"\n'
    for name, v in (("attn_kernel", 256), ("wo_kernel", 80), ("ffn1_kernel", 160), ("ffn2_kernel", 96)):
        s += ".p2align 6\n" + kd(name, v, 96)
    open(out, "w").write(s)


if __name__ == "__main__":
    main(sys.argv[1] if len(sys.argv) > 1 else "sequential_preLN__mha_block_cached__geglu_ffn__decode.s")
```
